```python
import torch

def _softmax(x, axis=-1):
    return torch.softmax(x, dim=axis)

def _gelu(x):
    return torch.nn.functional.gelu(x, approximate='tanh')

def _silu(x):
    return torch.nn.functional.silu(x)

def _sigmoid(x):
    return torch.sigmoid(x)

def _layernorm(x, axis=-1, eps=1e-05):
    m = x.mean(dim=axis, keepdim=True)
    v = x.var(dim=axis, keepdim=True, unbiased=False)
    return (x - m) / torch.sqrt(v + eps)

def _scatter_add(tgt, idx, src, axis=0):
    return tgt.clone().index_add_(axis, idx, src)

def _segment_sum(src, seg, n):
    out = torch.zeros((n,) + src.shape[1:], dtype=src.dtype)
    return out.index_add_(0, seg, src)

def _pad(x, pw):
    flat = tuple((v for pair in reversed(pw) for v in pair))
    return torch.nn.functional.pad(x, flat)
kernel_name = 'adaLN_cond__mha_block_cached__swiglu_ffn__decode'

def setup_inputs():

    _w = lambda a: (lambda t: t.to(torch.bfloat16) if t.is_floating_point() else t)(torch.as_tensor(a))

    def _A_setup():
        B, Sq, D = (2, 1, 640)
        H, Sk, Dh = (32, 16384, 128)
        return {'x': _w((lambda *s: torch.randn(*s, dtype=torch.bfloat16) * 0.1)(B, Sq, D)), 'k_cache': _w((lambda *s: torch.randn(*s, dtype=torch.bfloat16) * 0.8)(B, H, Sk, Dh)), 'v_cache': _w((lambda *s: torch.randn(*s, dtype=torch.bfloat16) * 1.6)(B, H, Sk, Dh)), 'wq': _w((lambda *s: torch.randn(*s, dtype=torch.bfloat16) * 0.8)(D, H * Dh) * D ** (-0.5)), 'wo': _w((lambda *s: torch.randn(*s, dtype=torch.bfloat16) * 1.6)(H * Dh, D) * (H * Dh) ** (-0.5))}
    _A_in = _A_setup()

    def _B_setup():
        B, S, D, F = (2, 1, 640, 1728)
        return {'x': _w((lambda *s: torch.randn(*s, dtype=torch.bfloat16) * 0.1)(B, S, D)), 'w_gate': _w((lambda *s: torch.randn(*s, dtype=torch.bfloat16) * 0.1)(D, F)), 'w_up': _w((lambda *s: torch.randn(*s, dtype=torch.bfloat16) * 0.1)(D, F)), 'w_down': _w((lambda *s: torch.randn(*s, dtype=torch.bfloat16) * 0.1)(F, D))}
    _B_in = _B_setup()
    return {'A_x': _A_in['x'], 'A_k_cache': _A_in['k_cache'], 'A_v_cache': _A_in['v_cache'], 'A_wq': _A_in['wq'], 'A_wo': _A_in['wo'], 'B_x': _B_in['x'], 'B_w_gate': _B_in['w_gate'], 'B_w_up': _B_in['w_up'], 'B_w_down': _B_in['w_down'], 'c': _w((lambda *s: torch.randn(*s, dtype=torch.bfloat16) * 0.2)(2, 640) * 8.0), 'w_mod': _w((lambda *s: torch.randn(*s, dtype=torch.bfloat16) * 0.2)(640, 6 * 640) * 640 ** (-0.5) * 8.0)}

def reference(A_x, A_k_cache, A_v_cache, A_wq, A_wo, B_x, B_w_gate, B_w_up, B_w_down, c, w_mod):

    def _A_ref(x, k_cache, v_cache, wq, wo):
        B, Sq, D = x.shape
        H, Dh = (32, 128)
        q = (lambda x, *d: x.permute(*d))((x @ wq).reshape(B, Sq, H, Dh), 0, 2, 1, 3)
        scores = torch.einsum('bhqd,bhkd->bhqk', q, k_cache) * Dh ** (-0.5)
        p = _softmax(scores, axis=-1)
        o = torch.einsum('bhqk,bhkd->bhqd', p, v_cache)
        return (lambda x, *d: x.permute(*d))(o, 0, 2, 1, 3).reshape(B, Sq, H * Dh) @ wo

    def _B_ref(x, w_gate, w_up, w_down):
        g = _silu(x @ w_gate)
        u = x @ w_up
        return g * u @ w_down
    x = A_x
    mod = (_silu(c) @ w_mod).reshape(c.shape[0], 6, 1, -1)
    sa, ca, ga, sb, cb, gb = (mod[:, 0].clone(), mod[:, 1].clone(), mod[:, 2].clone(), mod[:, 3].clone(), mod[:, 4].clone(), mod[:, 5].clone())
    h = _layernorm(x, axis=-1) * (1 + ca) + sa
    x = x + ga * _A_ref(h, A_k_cache, A_v_cache, A_wq, A_wo)
    h = _layernorm(x, axis=-1) * (1 + cb) + sb
    x = x + gb * _B_ref(h, B_w_gate, B_w_up, B_w_down)
    return x
```

```python
KN = "adaLN_cond__mha_block_cached__swiglu_ffn__decode_kernel"
CEXP = 0x3e0293ee
import struct, math
def f2u(x): return struct.unpack("<I", struct.pack("<f", x))[0]
C_SM = f2u(128 ** -0.5 * math.log2(math.e))
LOG2E = f2u(math.log2(math.e))
NEG = f2u(-1e30)
TAGC = 0x9E3779B9
W_CNT, W_MOD, W_Q, W_X1, W_PART, W_Y, W_D = 0x10000, 0x60000, 0x68000, 0x70000, 0x80000, 0x110000, 0x160000
W_SIZE = 0x200000
L_WQ = 0; L_MODS = 20480; L_MOD2 = 40960; L_WO = 61440
L_GATE = 20480; L_UP = 61440; L_DOWN = 102400
L_ACT = 143360; L_H = L_ACT + 2560; L_Q = L_H + 2560; L_ST = L_Q + 512; L_OH = L_ST + 4352; L_GU = L_OH + 512; L_AC = L_GU + 1024
L_END = L_AC + 128
L_ST2 = 0
LDS = 159744
assert L_END <= LDS
SPIN = 60000

class G:
    def __init__(s, NB=3, PACE=8, stamps=False, mode="full"):
        s.L = []; s.NB = NB; s.PACE = PACE; s.stamps = stamps; s.mode = mode; s.n = 0
    def e(s, x): s.L.append("  " + x)
    def lab(s, x): s.L.append(x + ":")
    def uniq(s, p): s.n += 1; return f"{p}_{s.n}"
    def srd(s, d, p, size):
        s.e(f"s_mov_b32 s{d}, s{p}"); s.e(f"s_and_b32 s{d+1}, s{p+1}, 0xffff")
        s.e(f"s_mov_b32 s{d+2}, {hex(size)}"); s.e(f"s_mov_b32 s{d+3}, 0x20000")
    def stamp(s, k):
        if s.stamps:
            s.e("s_memrealtime s[70:71]"); s.e("s_waitcnt lgkmcnt(0)"); s.e(f"s_mov_b32 s{80+k}, s70")
    def stamp_fill(s, k):
        if s.stamps:
            s.e("s_memrealtime s[70:71]"); s.e("s_waitcnt lgkmcnt(0)")
            for j in range(k, 8): s.e(f"s_mov_b32 s{80+j}, s70")
    def stamp_write(s):
        if s.stamps:
            s.e("s_add_u32 s72, s28, 0x10000000"); s.e("s_addc_u32 s73, s29, 0")
            s.e("s_lshl_b32 s74, s2, 5"); s.e("v_mov_b32 v250, s74")
            s.e("s_mov_b64 exec, 1")
            for j in range(0, 8, 2):
                s.e(f"v_mov_b32 v252, s{80+j}"); s.e(f"v_mov_b32 v253, s{81+j}")
                s.e(f"global_store_dwordx2 v250, v[252:253], s[72:73] offset:{j*4}")
                s.e("s_nop 1")
            s.e("s_mov_b64 exec, -1")
    def wred(s, op, t, src):
        e = s.e
        e("s_nop 1")
        e(f"{op}_dpp v{t}, v{src}, v{src} row_ror:8 row_mask:0xf bank_mask:0xf")
        for r in (4, 2, 1):
            e("s_nop 1"); e(f"{op}_dpp v{t}, v{t}, v{t} row_ror:{r} row_mask:0xf bank_mask:0xf")
        e("s_nop 1"); e(f"{op}_dpp v{t}, v{t}, v{t} row_bcast:15 row_mask:0xa bank_mask:0xf")
        e("s_nop 1"); e(f"{op}_dpp v{t}, v{t}, v{t} row_bcast:31 row_mask:0xc bank_mask:0xf")
    def poll(s, loads, t0, wide=4, pre=None, execs=None):
        e = s.e
        lp = s.uniq("L_poll"); dn = s.uniq("L_polld")
        e(f"s_mov_b32 s56, {SPIN}")
        s.lab(lp)
        for k, (d, vo, so, imm) in enumerate(loads):
            if execs and execs.get(k): e("s_mov_b32 exec_lo, -1"); e("s_mov_b32 exec_hi, 0")
            off = f" offset:{imm}" if imm else ""
            e(f"buffer_load_dwordx{wide} v[{d}:{d+wide-1}], v{vo}, s[36:39], {so} offen{off} sc1")
            if execs and execs.get(k): e("s_mov_b64 exec, -1")
        e("s_waitcnt vmcnt(0)")
        first = True
        for (d, vo, so, imm) in loads:
            for q in range(1, wide, 2):
                if first: e(f"v_xor_b32 v{t0}, s30, v{d+q}"); first = False
                else:
                    e(f"v_xor_b32 v{t0+1}, s30, v{d+q}"); e(f"v_or_b32 v{t0}, v{t0}, v{t0+1}")
        e(f"v_cmp_ne_u32 vcc, 0, v{t0}")
        e("s_sub_u32 s56, s56, 1")
        e("s_cmp_eq_u32 s56, 0"); e(f"s_cbranch_scc1 {dn}")
        e("s_and_b64 vcc, exec, vcc")
        e(f"s_cbranch_vccnz {lp}")
        s.lab(dn)
    def dma(s, n, voff, srd, sreg, step, ldsbase, nt=False):
        e = s.e
        for i in range(n):
            e(f"s_mov_b32 m0, {ldsbase + i*1024}")
            if i: e(f"s_add_u32 s{sreg}, s{sreg}, {step}")
            else: e("s_nop 0")
            e(f"buffer_load_dwordx4 v{voff}, s[{srd}:{srd+3}], s{sreg} offen" + (" nt" if nt else "") + " lds")
    def gemv(s, acc, va, vb, RB, steps, r0, batch=10, astep=64, zero=True):
        e = s.e
        k = 0; first = zero
        while k < steps:
            nb = min(batch, steps - k)
            for j in range(nb):
                r = r0 + j*8; st = k + j
                e(f"ds_read_b128 v[{r}:{r+3}], v{va} offset:{st*astep}")
                e(f"ds_read_b64_tr_b16 v[{r+4}:{r+5}], v{vb} offset:{st*32*RB}")
                e(f"ds_read_b64_tr_b16 v[{r+6}:{r+7}], v{vb} offset:{st*32*RB + 4*RB}")
            e("s_waitcnt lgkmcnt(0)")
            for j in range(nb):
                r = r0 + j*8
                c = "0" if first else f"v[{acc}:{acc+3}]"; first = False
                e(f"v_mfma_f32_16x16x32_bf16 v[{acc}:{acc+3}], v[{r}:{r+3}], v[{r+4}:{r+7}], {c}")
            k += nb
        e("s_nop 7")
    def gemv_addr(s, va, vb, abase, arow, bbase, RB, t):
        e = s.e
        e(f"v_and_b32 v{t}, 1, v0"); e(f"v_mul_u32_u24 v{va}, {arow}, v{t}")
        e(f"v_lshrrev_b32 v{t}, 4, v0"); e(f"v_lshl_add_u32 v{va}, v{t}, 4, v{va}")
        e(f"v_add_u32 v{va}, {abase}, v{va}")
        e(f"v_lshlrev_b32 v{vb}, 3, v{t}")
        e(f"v_bfe_u32 v{t}, v0, 2, 2"); e(f"v_add_u32 v{vb}, v{vb}, v{t}")
        e(f"v_mul_u32_u24 v{vb}, {RB}, v{vb}")
        e(f"v_and_b32 v{t}, 3, v0"); e(f"v_lshl_add_u32 v{vb}, v{t}, 3, v{vb}")
        if isinstance(bbase, int): e(f"v_add_u32 v{vb}, {bbase}, v{vb}")
        else: e(f"v_add_u32 v{vb}, {bbase}, v{vb}")
    def unpack(s, lo, hi, src):
        s.e(f"v_and_b32 v{hi}, 0xffff0000, v{src}"); s.e(f"v_lshlrev_b32 v{lo}, 16, v{src}")
    def rnd2(s, a, b, t):
        s.e(f"v_cvt_pk_bf16_f32 v{t}, v{a}, v{b}"); s.unpack(a, b, t)

    def save_state(s, bexpr):
        e = s.e
        e("s_lshl_b32 s57, s31, 1"); e(f"s_add_u32 s57, s57, {bexpr}"); e("s_mul_i32 s57, s57, 544"); e(f"s_add_u32 s57, s57, {L_ST}")
        s.wred("v_add_f32", 14, 13)
        e("v_lshrrev_b32 v15, 4, v0"); e("v_lshlrev_b32 v15, 7, v15"); e("v_and_b32 v1, 15, v0"); e("v_lshl_add_u32 v15, v1, 2, v15")
        e("v_add_u32 v15, s57, v15")
        e("s_mov_b32 exec_lo, 0x00ff00ff"); e("s_mov_b32 exec_hi, 0x00ff00ff")
        for r in range(4): e(f"ds_write_b32 v15, v{16+r} offset:{r*32}")
        e("s_mov_b32 exec_lo, 0"); e("s_mov_b32 exec_hi, 0x80000000")
        e("v_mov_b32 v13, v14"); e("v_mov_b32 v15, s57")
        e("ds_write_b64 v15, v[12:13] offset:512")
        e("s_mov_b64 exec, -1")
    def init_state(s):
        e = s.e
        e(f"v_mov_b32 v12, {hex(NEG)}"); e("v_mov_b32 v13, 0")
        for r in range(4): e(f"v_mov_b32 v{16+r}, 0")
    def load_q(s, b):
        e = s.e
        e("v_bfe_u32 v14, v0, 2, 2"); e("v_lshrrev_b32 v15, 4, v0"); e("v_lshl_add_u32 v14, v15, 2, v14"); e("v_lshlrev_b32 v14, 4, v14")
        e(f"v_add_u32 v14, {L_Q + b*256}, v14")
        e(f"ds_read_b128 v[28:31], v14")
        e("v_and_b32 v15, 3, v0")
        e("s_waitcnt lgkmcnt(0)")
        for t in range(4):
            e(f"v_cmp_eq_u32 vcc, {t}, v15"); e("s_nop 1")
            for r in range(4): e(f"v_cndmask_b32 v{40+4*t+r}, 0, v{28+r}, vcc")
    def tile_loads(s, j, treg, dummy=False):
        e = s.e
        e(f"s_lshr_b32 s52, s{treg}, 9"); e("s_lshl_b32 s52, s52, 5"); e("s_add_u32 s52, s52, s32"); e("s_lshl_b32 s52, s52, 22")
        e(f"s_and_b32 s53, s{treg}, 511"); e("s_lshl_b32 s53, s53, 13"); e("s_add_u32 s52, s52, s53"); e("s_add_u32 s53, s52, 4096")
        base = 64 + 64*j
        for u in range(8):
            r = base + 4*u
            e(f"buffer_load_dwordx4 v[{r}:{r+3}], v2, s[40:43], s{52 + u//4} offen offset:{(u%4)*1024} nt")
        for u in range(8):
            r = base + 32 + 4*u
            e(f"buffer_load_dwordx4 v[{r}:{r+3}], v3, s[44:47], s{52 + u//4} offen offset:{(u%4)*1024} nt")
        if dummy:
            e("buffer_load_dword v8, v3, s[40:43], s52 offen nt")
        else:
            e(f"v_mov_b32 v{5+j}, 1"); e("s_mov_b64 exec, 1")
            e(f"buffer_atomic_add v{5+j}, v4, s[36:39], 0 offen sc0")
            e("s_mov_b64 exec, -1")
    def consume(s, j):
        e = s.e
        base = 64 + 64*j
        for t in range(4):
            for a in range(2):
                u = 4*a + t; r = base + 4*u; acc = 20 + 4*a
                c = "0" if t == 0 else f"v[{acc}:{acc+3}]"
                e(f"v_mfma_f32_16x16x32_bf16 v[{acc}:{acc+3}], v[{r}:{r+3}], v[{40+4*t}:{43+4*t}], {c}")
        e("s_nop 7")
        D = "row_mask:0xf"
        e(f"v_add_f32_dpp v9, v21, v20 row_ror:12 {D} bank_mask:0x1")
        e(f"v_add_f32_dpp v9, v24, v25 row_ror:4 {D} bank_mask:0x2")
        e(f"v_add_f32_dpp v9, v22, v9 row_ror:8 {D} bank_mask:0x1")
        e(f"v_add_f32_dpp v9, v26, v9 row_ror:12 {D} bank_mask:0x2")
        e(f"v_add_f32_dpp v9, v23, v9 row_ror:4 {D} bank_mask:0x1")
        e(f"v_add_f32_dpp v9, v27, v9 row_ror:8 {D} bank_mask:0x2")
        s.wred("v_max_f32", 14, 9)
        e("s_nop 0"); e("v_readlane_b32 s54, v14, 63"); e("s_nop 1")
        e("v_max_f32 v14, s54, v12")
        e("v_sub_f32 v15, v12, v14"); e("v_sub_f32 v10, v9, v14")
        e("v_mul_f32 v15, s55, v15"); e("v_mul_f32 v10, s55, v10")
        e("v_exp_f32 v15, v15"); e("v_exp_f32 v10, v10")
        e("v_mov_b32 v12, v14")
        e("v_fma_f32 v13, v13, v15, v10")
        for r in range(4): e(f"v_mul_f32 v{16+r}, v{16+r}, v15")
        e("v_cvt_pk_bf16_f32 v10, v10, v10")
        e("s_nop 1")
        def ands(u):
            b = 28 + 4*(u & 1)
            for r in range(4): e(f"v_and_b32_dpp v{b+r}, v10, v{36+r} row_newbcast:{u} row_mask:0xf bank_mask:0xf")
        ands(0)
        for u in range(8):
            if u < 7: ands(u+1)
            else: e("s_nop 1")
            r = base + 32 + 4*u; b = 28 + 4*(u & 1)
            e(f"v_mfma_f32_16x16x32_bf16 v[16:19], v[{r}:{r+3}], v[{b}:{b+3}], v[16:19]")
    def streamer(s):
        e = s.e; NB = s.NB
        s.srd(40, 6, 0x10000000); s.srd(44, 8, 0x10000000)
        e("v_bfe_u32 v1, v0, 2, 2"); e("v_lshlrev_b32 v2, 8, v1")
        e("v_and_b32 v1, 3, v0"); e("v_lshl_add_u32 v2, v1, 4, v2")
        e("v_lshrrev_b32 v1, 4, v0"); e("v_lshl_add_u32 v2, v1, 6, v2")
        e("v_lshlrev_b32 v3, 4, v0")
        e("s_lshl_b32 s57, s33, 2"); e("s_add_u32 s57, s57, s31")
        for j in range(NB):
            e(f"s_add_u32 s{60+j}, s57, {32*j}")
            s.tile_loads(j, 60+j, dummy=True)
            if j < NB-1 and s.PACE is not None: e(f"s_waitcnt vmcnt({s.PACE})")
        e(f"s_lshl_b32 s58, s32, 13"); e(f"s_add_u32 s58, s58, {W_CNT}"); e("v_mov_b32 v4, s58")
        for j in range(NB):
            e(f"s_add_u32 s58, s57, {(32*(NB+j) - 2*NB*32) & 0xffffffff}"); e(f"v_mov_b32 v{5+j}, s58")
        e("v_and_b32 v1, 15, v0")
        for r in range(4): e(f"v_mov_b32 v{36+r}, 0")
        e("v_mov_b32 v14, 0xffff"); e("v_mov_b32 v15, 0xffff0000")
        for r in range(4):
            e(f"v_cmp_eq_u32 vcc, {2*r}, v1"); e("s_nop 1"); e(f"v_cndmask_b32 v{36+r}, v{36+r}, v14, vcc")
            e(f"v_cmp_eq_u32 vcc, {2*r+1}, v1"); e("s_nop 1"); e(f"v_cndmask_b32 v{36+r}, v{36+r}, v15, vcc")
        e(f"v_mov_b32 v9, {hex(NEG)}")
        s.init_state()
        e(f"s_mov_b32 s55, {hex(C_SM)}")
        e("s_mov_b32 s59, 0")
        e("s_mov_b32 s64, 0")
        e("s_waitcnt lgkmcnt(0)"); e(f"s_add_u32 s30, s30, {hex(TAGC)}")
        e("s_barrier")
        s.load_q(0)
        s.lab("L_stream")
        for j in range(NB):
            s.lab(f"L_pos{j}")
            e(f"s_waitcnt vmcnt({(NB-1)*17})")
            e("s_cmp_eq_u32 s64, 0"); e(f"s_cbranch_scc1 L_nd{j}")
            e("s_waitcnt vmcnt(0)")
            s.lab(f"L_nd{j}")
            e(f"s_lshr_b32 s57, s{60+j}, 9"); e("s_cmp_lg_u32 s57, s59"); e(f"s_cbranch_scc1 L_sw{j}")
            s.lab(f"L_swr{j}")
            e(f"v_readfirstlane_b32 s58, v{5+j}")
            s.consume(j)
            e("s_cmp_eq_u32 s64, 0"); e(f"s_cbranch_scc0 L_dr{j}")
            e(f"s_add_u32 s{60+j}, s58, {2*NB*32}")
            e(f"s_cmp_ge_u32 s{60+j}, 1024"); e(f"s_cbranch_scc1 L_stop{j}")
            s.tile_loads(j, 60+j)
            if j == NB-1: e("s_branch L_pos0")
        for j in range(NB):
            nxt = f"L_pos{(j+1) % NB}"
            s.lab(f"L_stop{j}")
            e(f"s_mov_b32 s64, {NB-1}"); e(f"s_branch {nxt}")
            s.lab(f"L_dr{j}")
            e("s_sub_u32 s64, s64, 1"); e("s_cmp_eq_u32 s64, 0"); e("s_cbranch_scc1 L_sdone")
            e(f"s_branch {nxt}")
            s.lab(f"L_sw{j}")
            s.save_state(0)
            s.init_state()
            s.load_q(1)
            e("s_mov_b32 s59, 1")
            e(f"s_branch L_swr{j}")
        s.lab("L_sdone")
        e("s_nop 7")
        s.save_state("s59")
        e("s_cmp_eq_u32 s59, 1"); e("s_cbranch_scc1 L_ssaved")
        s.init_state(); e("s_nop 1")
        s.save_state(1)
        s.lab("L_ssaved")
        e("s_waitcnt lgkmcnt(0)")
        e("s_barrier")
```

```python
import sys
from gk1 import *

class K(G):
    def lanes16(s): s.e("s_mov_b64 exec, 0xffff")
    def allx(s): s.e("s_mov_b64 exec, -1")
    def unpack_gr(s, d, g):
        s.e(f"v_lshlrev_b32 v{d}, 16, v{g}"); s.e(f"v_lshlrev_b32 v{d+1}, 16, v{g+2}")
        s.e(f"v_and_b32 v{d+2}, 0xffff0000, v{g}"); s.e(f"v_and_b32 v{d+3}, 0xffff0000, v{g+2}")
    def ln_mod(s, X, SG, CG, t):
        e = s.e
        for b in range(2):
            xs = [X + 4*j + 2*b + q for j in range(5) for q in range(2)]
            e(f"v_add_f32 v{t}, v{xs[0]}, v{xs[1]}")
            for r in xs[2:]: e(f"v_add_f32 v{t}, v{t}, v{r}")
            s.wred("v_add_f32", t+1, t)
            e("s_nop 0"); e(f"v_readlane_b32 s57, v{t+1}, 63"); e("s_nop 1")
            e(f"v_mov_b32 v{t}, s57"); e(f"v_mul_f32 v{t}, {hex(f2u(1/640))}, v{t}")
            e(f"v_sub_f32 v{t+2}, v{xs[0]}, v{t}"); e(f"v_mul_f32 v{t+3}, v{t+2}, v{t+2}")
            for r in xs[1:]:
                e(f"v_sub_f32 v{t+2}, v{r}, v{t}"); e(f"v_fma_f32 v{t+3}, v{t+2}, v{t+2}, v{t+3}")
            s.wred("v_add_f32", t+1, t+3)
            e("s_nop 0"); e(f"v_readlane_b32 s57, v{t+1}, 63"); e("s_nop 1")
            e(f"v_mov_b32 v{t+1}, s57"); e(f"v_mul_f32 v{t+1}, {hex(f2u(1/640))}, v{t+1}")
            s.rnd2(t, t+1, t+2)
            e(f"v_add_f32 v{t+1}, {hex(f2u(1e-5))}, v{t+1}"); e(f"v_mov_b32 v{t+3}, 0"); s.rnd2(t+1, t+3, t+2)
            e(f"v_sqrt_f32 v{t+1}, v{t+1}"); e("s_nop 0"); s.rnd2(t+1, t+3, t+2)
            e(f"v_rcp_f32 v{t+1}, v{t+1}"); e("s_nop 0")
            for j in range(5):
                a, c = X + 4*j + 2*b, X + 4*j + 2*b + 1
                e(f"v_sub_f32 v{a}, v{a}, v{t}"); e(f"v_sub_f32 v{c}, v{c}, v{t}"); s.rnd2(a, c, t+2)
                e(f"v_mul_f32 v{a}, v{a}, v{t+1}"); e(f"v_mul_f32 v{c}, v{c}, v{t+1}"); s.rnd2(a, c, t+2)
                sg, cg = SG + 4*j, CG + 4*j
                for (dst, g) in ((t+4, cg), (t+6, sg)):
                    if b == 0:
                        e(f"v_lshlrev_b32 v{dst}, 16, v{g}"); e(f"v_lshlrev_b32 v{dst+1}, 16, v{g+2}")
                    else:
                        e(f"v_and_b32 v{dst}, 0xffff0000, v{g}"); e(f"v_and_b32 v{dst+1}, 0xffff0000, v{g+2}")
                e(f"v_add_f32 v{t+4}, 1.0, v{t+4}"); e(f"v_add_f32 v{t+5}, 1.0, v{t+5}"); s.rnd2(t+4, t+5, t+2)
                e(f"v_mul_f32 v{a}, v{a}, v{t+4}"); e(f"v_mul_f32 v{c}, v{c}, v{t+5}"); s.rnd2(a, c, t+2)
                e(f"v_add_f32 v{a}, v{a}, v{t+6}"); e(f"v_add_f32 v{c}, v{c}, v{t+7}")
                e(f"v_cvt_pk_bf16_f32 v{t+2}, v{a}, v{c}")
                e(f"ds_write_b32 v{t+8}, v{t+2} offset:{b*1280 + j*256}")
    def silu(s, x, t):
        e = s.e
        e(f"v_mul_f32 v{t}, {hex(f2u(-math.log2(math.e)))}, v{x}"); e(f"v_exp_f32 v{t}, v{t}"); e("s_nop 0")
        e(f"v_add_f32 v{t}, 1.0, v{t}"); e(f"v_rcp_f32 v{t}, v{t}"); e("s_nop 0"); e(f"v_mul_f32 v{x}, v{x}, v{t}")
    def unit_dma(s, srd, rowb, usreg, lds):
        e = s.e
        e("v_lshrrev_b32 v1, 1, v0"); e(f"v_mul_u32_u24 v2, {rowb}, v1"); e("v_and_b32 v1, 1, v0"); e("v_lshl_add_u32 v2, v1, 4, v2")
        e(f"s_lshl_b32 s52, s{usreg}, 5")
        s.dma(20, 2, srd, 52, 32*rowb, lds)
    def unit_pub(s, acc, usreg, wbase):
        e = s.e
        e(f"v_cvt_pk_bf16_f32 v4, v{acc}, v{acc+1}"); e("v_mov_b32 v5, s30")
        e(f"s_lshl_b32 s52, s{usreg}, 7"); e(f"s_add_u32 s52, s52, {wbase}"); e("v_lshlrev_b32 v1, 3, v0")
        s.lanes16(); e("buffer_store_dwordx2 v[4:5], v1, s[36:39], s52 offen sc1"); s.allx()
    def mod_unit(s, usreg, lds, do_act):
        e = s.e
        s.srd(40, 24, 640*3840*2)
        if do_act:
            s.srd(48, 22, 2560); e("v_lshlrev_b32 v3, 2, v0")
            for b in range(2):
                for j in range(5): e(f"buffer_load_dword v{16+b*5+j}, v3, s[48:51], 0 offen offset:{b*1280+j*256}")
        s.unit_dma(40, 7680, usreg, lds)
        if do_act:
            e("s_waitcnt vmcnt(20)"); e(f"v_add_u32 v3, {L_ACT}, v3")
            for q in range(10):
                s.unpack(8, 9, 16+q); s.silu(8, 10); s.silu(9, 11)
                e("v_cvt_pk_bf16_f32 v8, v8, v9"); e(f"ds_write_b32 v3, v8 offset:{(q//5)*1280+(q%5)*256}")
        s.gemv_addr(6, 7, L_ACT, 1280, lds, 32, 1)
        e("s_waitcnt vmcnt(0) lgkmcnt(0)")
        s.gemv(12, 6, 7, 32, 20, 16)
        s.unit_pub(12, usreg, W_MOD)
    def q_unit(s):
        e = s.e
        e("s_lshl_b32 s65, s33, 5"); e("s_add_u32 s65, s65, s32")
        s.srd(40, 10, 640*4096*2); s.srd(48, 4, 2560)
        e("s_and_b32 s57, s65, 7"); e("s_cmp_lg_u32 s57, 0"); e("s_cbranch_scc1 L_noinit")
        e("s_lshl_b32 s57, s65, 10"); e(f"s_add_u32 s57, s57, {W_CNT}")
        e("v_mov_b32 v1, 0"); e("s_mov_b64 exec, 1"); e("buffer_store_dword v1, v1, s[36:39], s57 offen sc1"); s.allx()
        s.lab("L_noinit")
        e("v_lshlrev_b32 v3, 2, v0")
        for b in range(2):
            for j in range(5): e(f"buffer_load_dword v{16+b*5+j}, v3, s[48:51], 0 offen offset:{b*1280+j*256}")
        s.unit_dma(40, 8192, 65, L_WQ)
        e("s_waitcnt vmcnt(20)")
        X = 32
        for b in range(2):
            for j in range(5): s.unpack(X+4*j+2*b, X+4*j+2*b+1, 16+b*5+j)
        e("v_lshlrev_b32 v9, 4, v0")
        for j in range(5): e(f"s_mov_b32 s{66+j}, {W_MOD + j*1024}")
        for j in range(5): e(f"s_mov_b32 s{72+j}, {W_MOD + 5120 + j*1024}")
        e("s_waitcnt vmcnt(0)")
        loads = [(64+4*j, 9, f"s{66+j}", 0) for j in range(5)] + [(84+4*j, 9, f"s{72+j}", 0) for j in range(5)]
        s.poll(loads[9:], 10); s.poll(loads, 10)
        e(f"v_lshlrev_b32 v28, 2, v0"); e(f"v_add_u32 v28, {L_H}, v28")
        s.ln_mod(X, 64, 84, 20)
        s.gemv_addr(6, 7, L_H, 1280, L_WQ, 32, 1)
        e("s_waitcnt lgkmcnt(0)")
        s.gemv(12, 6, 7, 32, 20, 104)
        s.unit_pub(12, 65, W_Q)
        e("s_lshl_b32 s57, s32, 10"); e(f"s_add_u32 s57, s57, {W_Q}")
        s.poll([(16, 9, "s57", 0)], 10)
        e("v_and_b32 v20, 0xffff, v16"); e("v_lshl_or_b32 v20, v18, 16, v20")
        e("v_lshrrev_b32 v21, 16, v16"); e("v_and_b32 v22, 0xffff0000, v18"); e("v_or_b32 v21, v21, v22")
        e("v_lshlrev_b32 v3, 2, v0"); e(f"v_add_u32 v3, {L_Q}, v3")
        e("ds_write_b32 v3, v20"); e("ds_write_b32 v3, v21 offset:256")
        e("s_waitcnt lgkmcnt(0)")
    def combine(s, base, np_):
        e = s.e
        e("s_mul_i32 s58, s57, 544"); e(f"s_add_u32 s58, s58, {base}")
        e("v_lshlrev_b32 v1, 3, v0"); e("v_add_u32 v1, s58, v1"); e("v_mov_b32 v2, s58")
        for p in range(np_):
            e(f"ds_read_b64 v[{32+2*p}:{33+2*p}], v1 offset:{p*1088}")
            e(f"ds_read_b64 v[{64+2*p}:{65+2*p}], v2 offset:{p*1088+512}")
        e("s_waitcnt lgkmcnt(0)")
        e("v_max_f32 v18, v64, v66")
        for p in range(2, np_): e(f"v_max_f32 v18, v18, v{64+2*p}")
        e(f"s_mov_b32 s55, {hex(C_SM)}")
        for p in range(np_):
            e(f"v_sub_f32 v{64+2*p}, v{64+2*p}, v18"); e(f"v_mul_f32 v{64+2*p}, s55, v{64+2*p}"); e(f"v_exp_f32 v{64+2*p}, v{64+2*p}")
        e("s_nop 0")
        e("v_mul_f32 v16, v32, v64"); e("v_mul_f32 v17, v33, v64"); e("v_mul_f32 v19, v65, v64")
        for p in range(1, np_):
            e(f"v_fma_f32 v16, v{32+2*p}, v{64+2*p}, v16"); e(f"v_fma_f32 v17, v{33+2*p}, v{64+2*p}, v17"); e(f"v_fma_f32 v19, v{65+2*p}, v{64+2*p}, v19")
    def pub_tile(s, acc, soff):
        e = s.e
        e(f"v_mov_b32 v4, v{acc}"); e("v_mov_b32 v5, s30"); e(f"v_mov_b32 v6, v{acc+1}"); e("v_mov_b32 v7, s30")
        s.lanes16(); e(f"buffer_store_dwordx4 v[4:7], v1, s[36:39], {soff} offen sc1"); s.allx(); e("s_nop 1")
    def xrow_sum(s, r, t):
        e = s.e
        e(f"ds_bpermute_b32 v{t+2}, v{t}, v{r}"); e("s_waitcnt lgkmcnt(0)"); e(f"v_add_f32 v{r}, v{r}, v{t+2}")
        e(f"ds_bpermute_b32 v{t+2}, v{t+1}, v{r}"); e("s_waitcnt lgkmcnt(0)"); e(f"v_add_f32 v{r}, v{r}, v{t+2}")

    def roles(s):
        e = s.e
        e("s_mov_b32 s34, 0"); e("s_mov_b32 s35, 0")
        e("s_cmp_lt_u32 s33, 5"); e("s_cbranch_scc1 L_roled")
        e("s_mov_b32 s34, 1"); e("s_mov_b32 s35, s32")
        e("s_cmp_eq_u32 s33, 5"); e("s_cbranch_scc1 L_roled")
        e("s_mov_b32 s34, 2")
        e("s_cmp_eq_u32 s33, 7"); e("s_cbranch_scc1 L_roled")
        e("s_mov_b32 s34, 1"); e("s_add_u32 s35, s32, 32")
        e("s_cmp_lt_u32 s32, 22"); e("s_cbranch_scc1 L_roled")
        e("s_mov_b32 s34, 2"); e("s_add_u32 s35, s32, 10")
        e("s_cmp_lt_u32 s32, 30"); e("s_cbranch_scc1 L_roled")
        e("s_mov_b32 s34, 3")
        s.lab("L_roled")

    def helpers(s):
        e = s.e
        e("s_waitcnt lgkmcnt(0)"); e(f"s_add_u32 s30, s30, {hex(TAGC)}")
        e("s_cmp_eq_u32 s31, 5"); e("s_cbranch_scc1 L_hq")
        e("s_cmp_eq_u32 s31, 4"); e("s_cbranch_scc0 L_hb1")
        e("s_cmp_lt_u32 s33, 5"); e("s_cbranch_scc0 L_hb1")
        e("s_lshl_b32 s65, s33, 4"); e("s_and_b32 s57, s32, 15"); e("s_add_u32 s65, s65, s57")
        e("s_cmp_lt_u32 s32, 16"); e("s_cselect_b32 s57, 0, 80"); e("s_add_u32 s65, s65, s57")
        s.mod_unit(65, L_MODS, True)
        s.stamp(1)
        e("s_waitcnt lgkmcnt(0)")
        e("s_branch L_hb1")
        s.lab("L_hq"); s.q_unit()
        s.lab("L_hb1")
        e("s_barrier")
        s.stamp(2)
        e("s_cmp_eq_u32 s31, 4"); e("s_cbranch_scc1 L_h4")
        e("s_cmp_eq_u32 s34, 1"); e("s_cbranch_scc1 L_hffn")
        e("s_cmp_eq_u32 s34, 0"); e("s_cbranch_scc0 L_hb2")
        e("s_cmp_eq_u32 s31, 7"); e("s_cbranch_scc1 L_hwo")
        e("s_cmp_eq_u32 s31, 6"); e("s_cbranch_scc0 L_hb2")
        e("s_cmp_lt_u32 s32, 16"); e("s_cbranch_scc0 L_hb2")
        e("s_lshl_b32 s65, s33, 4"); e("s_add_u32 s65, s65, s32"); e("s_add_u32 s65, s65, 160")
        s.mod_unit(65, L_MOD2, False)
        e("s_branch L_hb2")
        s.lab("L_hwo")
        s.srd(40, 12, 4096*640*2)
        e("v_lshrrev_b32 v1, 4, v0"); e("v_mul_u32_u24 v2, 1280, v1"); e("v_and_b32 v1, 15, v0"); e("v_lshl_add_u32 v2, v1, 4, v2")
        e("s_mul_i32 s52, s32, 163840"); e("s_lshl_b32 s57, s33, 8"); e("s_add_u32 s52, s52, s57")
        s.dma(32, 2, 40, 52, 4*1280, L_WO, nt=True)
        e("s_branch L_hb2")
        s.lab("L_hffn")
        e("s_cmp_eq_u32 s31, 7"); e("s_cbranch_scc1 L_hdown")
        e("s_cmp_eq_u32 s31, 5"); e("s_cselect_b32 s40, s16, s18"); e("s_cselect_b32 s41, s17, s19")
        e(f"s_mov_b32 s53, {L_UP}"); e(f"s_cselect_b32 s53, {L_GATE}, s53")
        e("s_and_b32 s41, s41, 0xffff"); e(f"s_mov_b32 s42, {640*1728*2}"); e("s_mov_b32 s43, 0x20000")
        e("v_lshrrev_b32 v1, 2, v0"); e("v_mul_u32_u24 v2, 3456, v1"); e("v_and_b32 v1, 3, v0"); e("v_lshl_add_u32 v2, v1, 4, v2")
        e("s_lshl_b32 s52, s35, 6")
        for i in range(40):
            e("s_mov_b32 m0, s53")
            e("s_nop 0")
            e("buffer_load_dwordx4 v2, s[40:43], s52 offen lds")
            e("s_add_u32 s53, s53, 1024"); e(f"s_add_u32 s52, s52, {16*3456}")
        e("s_branch L_hb2")
        s.lab("L_hdown")
        s.srd(40, 20, 1728*640*2)
        e("v_lshlrev_b32 v2, 4, v0"); e("s_mul_i32 s52, s35, 40960")
        s.dma(40, 2, 40, 52, 1024, L_DOWN, nt=True)
        e("s_branch L_hb2")
        s.lab("L_h4")
        e("s_cmp_eq_u32 s34, 1"); e("s_cbranch_scc1 L_h4f")
        e("s_cmp_eq_u32 s34, 2"); e("s_cbranch_scc0 L_hb2")
        s.srd(48, 4, 2560)
        e("v_and_b32 v1, 15, v0"); e("v_lshlrev_b32 v9, 3, v1"); e("v_lshlrev_b32 v8, 1, v1")
        e("s_lshl_b32 s57, s35, 5")
        e("buffer_load_ushort v204, v8, s[48:51], s57 offen"); e("buffer_load_ushort v205, v8, s[48:51], s57 offen offset:1280")
        e("s_lshl_b32 s57, s35, 7"); e(f"s_add_u32 s58, s57, {W_MOD + 1280*8}"); e(f"s_add_u32 s57, s57, {W_MOD + 3200*8}")
        s.poll([(200, 9, "s58", 0), (202, 9, "s57", 0)], 10, wide=2)
        e("v_lshlrev_b32 v204, 16, v204"); e("v_lshlrev_b32 v205, 16, v205")
        e("s_branch L_hb2")
        s.lab("L_h4f")
        e("v_lshlrev_b32 v9, 4, v0")
        for j in range(5): e(f"s_mov_b32 s{68+j}, {W_MOD + 1920*8 + j*1024}")
        for j in range(5): e(f"s_mov_b32 s{74+j}, {W_MOD + 2560*8 + j*1024}")
        loads = [(160+4*j, 9, f"s{68+j}", 0) for j in range(5)] + [(180+4*j, 9, f"s{74+j}", 0) for j in range(5)]
        s.poll(loads[9:], 10); s.poll(loads, 10)
        s.lab("L_hb2")
        e("s_waitcnt vmcnt(0) lgkmcnt(0)")
        e("s_barrier")

    def tail(s):
        e = s.e
        s.stamp(3)
        e("s_cmp_lt_u32 s31, 2"); e("s_cbranch_scc0 L_t1d")
        e("s_mov_b32 s57, s31")
        s.combine(L_ST, 4)
        e("s_lshl_b32 s58, s2, 1"); e("s_add_u32 s58, s58, s31"); e("s_mul_i32 s58, s58, 1088"); e(f"s_add_u32 s58, s58, {W_PART}")
        e("v_mov_b32 v4, v16"); e("v_mov_b32 v5, s30"); e("v_mov_b32 v6, v17"); e("v_mov_b32 v7, s30"); e("v_lshlrev_b32 v1, 4, v0")
        e("buffer_store_dwordx4 v[4:7], v1, s[36:39], s58 offen sc1")
        e("v_mov_b32 v8, v18"); e("v_mov_b32 v9, s30"); e("v_mov_b32 v10, v19"); e("v_mov_b32 v11, s30"); e("v_mov_b32 v1, 0")
        e("s_mov_b64 exec, 1"); e("buffer_store_dwordx4 v[8:11], v1, s[36:39], s58 offen offset:1024 sc1"); s.allx()
        s.lab("L_t1d")
        e("s_cmp_eq_u32 s34, 0"); e("s_cbranch_scc1 L_t2")
        e("s_cmp_eq_u32 s34, 1"); e("s_cbranch_scc1 L_t4")
        e("s_cmp_eq_u32 s34, 2"); e("s_cbranch_scc0 L_fin")
        e("s_cmp_eq_u32 s31, 4"); e("s_cbranch_scc0 L_fin")
        e("v_lshlrev_b32 v9, 4, v0")
        e("v_xor_b32 v12, 16, v0"); e("v_lshlrev_b32 v12, 2, v12"); e("v_xor_b32 v13, 32, v0"); e("v_lshlrev_b32 v13, 2, v13")
        e("s_lshl_b32 s57, s35, 13"); e(f"s_add_u32 s57, s57, {W_Y}"); e("s_add_u32 s58, s57, 4096")
        s.poll([(32+4*i, 9, "s57" if i < 4 else "s58", (i % 4)*1024) for i in range(8)], 10)
        s.stamp(4)
        e("v_mov_b32 v16, v32"); e("v_mov_b32 v17, v34")
        for i in range(1, 8): e(f"v_add_f32 v16, v16, v{32+4*i}"); e(f"v_add_f32 v17, v17, v{34+4*i}")
        s.xrow_sum(16, 12); s.xrow_sum(17, 12)
        s.rnd2(16, 17, 18)
        s.unpack(19, 20, 200)
        e("v_mul_f32 v16, v16, v19"); e("v_mul_f32 v17, v17, v20"); s.rnd2(16, 17, 18)
        e("v_add_f32 v204, v204, v16"); e("v_add_f32 v205, v205, v17")
        e("v_cvt_pk_bf16_f32 v4, v204, v205"); e("v_mov_b32 v5, s30")
        e("s_lshl_b32 s57, s35, 7"); e(f"s_add_u32 s57, s57, {W_X1}"); e("v_lshlrev_b32 v1, 3, v0")
        s.lanes16(); e("buffer_store_dwordx2 v[4:5], v1, s[36:39], s57 offen sc1"); s.allx()
        s.unpack(204, 205, 4)
        s.stamp(5)
        e("s_mul_i32 s57, s35, 14336"); e(f"s_add_u32 s57, s57, {W_D}")
        for q in range(1, 4): e(f"s_add_u32 s{57+q}, s57, {4096*q}")
        e("v_mov_b32 v84, 0"); e("v_mov_b32 v85, s30"); e("v_mov_b32 v86, 0"); e("v_mov_b32 v87, s30")
        s.poll([(32+4*i, 9, f"s{57 + i//4}", (i % 4)*1024) for i in range(14)], 10, execs={13: "0xffffffff"})
        s.stamp(6)
        e("v_mov_b32 v16, v32"); e("v_mov_b32 v17, v34")
        for i in range(1, 14): e(f"v_add_f32 v16, v16, v{32+4*i}"); e(f"v_add_f32 v17, v17, v{34+4*i}")
        s.xrow_sum(16, 12); s.xrow_sum(17, 12)
        s.rnd2(16, 17, 18)
        s.unpack(19, 20, 202)
        e("v_mul_f32 v16, v16, v19"); e("v_mul_f32 v17, v17, v20"); s.rnd2(16, 17, 18)
        e("v_add_f32 v16, v204, v16"); e("v_add_f32 v17, v205, v17")
        e("v_cvt_pk_bf16_f32 v4, v16, v17")
        s.srd(48, 26, 2560)
        e("v_lshlrev_b32 v1, 1, v0"); e("s_lshl_b32 s57, s35, 5")
        s.lanes16()
        e("buffer_store_short v4, v1, s[48:51], s57 offen")
        e("buffer_store_short_d16_hi v4, v1, s[48:51], s57 offen offset:1280")
        s.allx()
        e("s_cmp_eq_u32 s35, 0"); e("s_cbranch_scc0 L_fin")
        e("v_mov_b32 v1, 0"); e("v_mov_b32 v4, s30"); e("s_mov_b64 exec, 1")
        e("buffer_store_dword v4, v1, s[36:39], 0 offen sc1"); s.allx()
        e("s_branch L_fin")
        s.lab("L_t2")
        e("s_lshl_b32 s57, s32, 3"); e("s_add_u32 s57, s57, s31"); e("s_mul_i32 s57, s57, 2176"); e(f"s_add_u32 s57, s57, {W_PART}")
        e("s_add_u32 s58, s57, 1088")
        e("v_lshlrev_b32 v9, 4, v0"); e("v_mov_b32 v8, 0")
        s.poll([(32, 9, "s57", 0), (36, 8, "s57", 1024), (40, 9, "s58", 0), (44, 8, "s58", 1024)], 10)
        e("s_mul_i32 s57, s31, 1088"); e(f"s_add_u32 s57, s57, {L_ST2}")
        e("v_lshlrev_b32 v1, 3, v0"); e("v_add_u32 v1, s57, v1"); e("v_mov_b32 v2, s57")
        e("ds_write2_b32 v1, v32, v34 offset0:0 offset1:1"); e("ds_write2_b32 v1, v40, v42 offset0:136 offset1:137")
        e("ds_write2_b32 v2, v36, v38 offset0:128 offset1:129")
        e("v_add_u32 v2, 544, v2"); e("ds_write2_b32 v2, v44, v46 offset0:128 offset1:129")
        e("s_waitcnt lgkmcnt(0)"); e("s_barrier")
        s.stamp(4)
        e("s_cmp_lt_u32 s31, 2"); e("s_cbranch_scc0 L_t2c")
        e("s_mov_b32 s57, s31")
        s.combine(L_ST2, 8)
        e("v_rcp_f32 v19, v19"); e("s_nop 0"); e("v_mul_f32 v16, v16, v19"); e("v_mul_f32 v17, v17, v19")
        e("v_cvt_pk_bf16_f32 v16, v16, v17")
        e("s_lshl_b32 s57, s31, 8"); e(f"s_add_u32 s57, s57, {L_OH}"); e("v_lshlrev_b32 v1, 2, v0"); e("v_add_u32 v1, s57, v1")
        e("ds_write_b32 v1, v16"); e("s_waitcnt lgkmcnt(0)")
        s.lab("L_t2c")
        e("s_barrier")
        e("s_lshl_b32 s57, s31, 5"); e(f"s_add_u32 s57, s57, {L_WO}")
        s.gemv_addr(2, 3, L_OH, 256, "s57", 256, 1)
        s.gemv(12, 2, 3, 256, 4, 32)
        e("s_lshl_b32 s57, s33, 3"); e("s_add_u32 s57, s57, s31"); e("s_lshl_b32 s57, s57, 13")
        e("s_lshl_b32 s58, s32, 8"); e("s_add_u32 s57, s57, s58"); e(f"s_add_u32 s57, s57, {W_Y}")
        e("v_lshlrev_b32 v1, 4, v0")
        s.pub_tile(12, "s57")
        s.stamp(5)
        e("s_branch L_fin")
        s.lab("L_t4")
        e("s_cmp_eq_u32 s31, 4"); e("s_cbranch_scc0 L_t4a")
        e("v_lshlrev_b32 v9, 4, v0")
        e(f"s_mov_b32 s57, {W_X1}"); e(f"s_mov_b32 s58, {W_X1+4096}")
        s.poll([(64+4*j, 9, "s57" if j < 4 else "s58", (j % 4)*1024) for j in range(5)], 10)
        s.stamp(4)
        for j in range(5): s.unpack_gr(32+4*j, 64+4*j)
        e(f"v_lshlrev_b32 v28, 2, v0"); e(f"v_add_u32 v28, {L_H}, v28")
        s.ln_mod(32, 160, 180, 20)
        e("s_waitcnt lgkmcnt(0)")
        s.lab("L_t4a")
        e("s_barrier")
        e("s_and_b32 s57, s31, 1"); e("s_lshl_b32 s57, s57, 5")
        e(f"s_mov_b32 s58, {L_GATE}"); e("s_bitcmp1_b32 s31, 1"); e(f"s_cselect_b32 s58, {L_UP}, s58"); e("s_add_u32 s57, s57, s58")
        e("s_lshr_b32 s58, s31, 2"); e("s_mul_i32 s59, s58, 20480"); e("s_add_u32 s57, s57, s59")
        s.gemv_addr(2, 3, L_H, 1280, "s57", 64, 1)
        e("s_mul_i32 s58, s58, 640"); e("v_add_u32 v2, s58, v2")
        s.gemv(12, 2, 3, 64, 10, 32)
        e("s_lshl_b32 s57, s31, 7"); e(f"s_add_u32 s57, s57, {L_GU}"); e("v_lshlrev_b32 v1, 2, v0"); e("v_add_u32 v1, s57, v1")
        s.lanes16(); e("ds_write_b32 v1, v12"); e("ds_write_b32 v1, v13 offset:64"); s.allx()
        e("s_waitcnt lgkmcnt(0)"); e("s_barrier")
        e("s_cmp_eq_u32 s31, 4"); e("s_cbranch_scc0 L_t4b")
        e("v_bfe_u32 v1, v0, 4, 1"); e("v_lshlrev_b32 v2, 7, v1"); e("v_lshrrev_b32 v1, 5, v0"); e("v_lshl_add_u32 v2, v1, 6, v2")
        e("v_and_b32 v3, 15, v0"); e("v_lshl_add_u32 v2, v3, 2, v2"); e(f"v_add_u32 v2, {L_GU}, v2")
        e("ds_read_b32 v16, v2"); e("ds_read_b32 v17, v2 offset:512"); e("ds_read_b32 v18, v2 offset:256"); e("ds_read_b32 v19, v2 offset:768")
        e("s_waitcnt lgkmcnt(0)")
        e("v_add_f32 v16, v16, v17"); e("v_add_f32 v17, v18, v19"); s.rnd2(16, 17, 18)
        s.silu(16, 18); e("v_mov_b32 v19, 0"); s.rnd2(16, 19, 18)
        e("v_mul_f32 v16, v16, v17"); e("v_cvt_pk_bf16_f32 v16, v16, v16")
        e("v_lshlrev_b32 v2, 6, v1"); e("v_and_b32 v3, 31, v0"); e("v_lshl_add_u32 v2, v3, 1, v2"); e(f"v_add_u32 v2, {L_AC}, v2")
        e("ds_write_b16 v2, v16"); e("s_waitcnt lgkmcnt(0)")
        s.lab("L_t4b")
        e("s_barrier")
        s.stamp(5)
        e("s_mul_i32 s57, s31, 160"); e(f"s_add_u32 s57, s57, {L_DOWN}")
        s.gemv_addr(2, 3, L_AC, 64, "s57", 1280, 1)
        e("ds_read_b128 v[28:31], v2")
        for q in range(5):
            e(f"ds_read_b64_tr_b16 v[{32+4*q}:{33+4*q}], v3 offset:{q*32}")
            e(f"ds_read_b64_tr_b16 v[{34+4*q}:{35+4*q}], v3 offset:{q*32 + 5120}")
        e("s_waitcnt lgkmcnt(0)")
        for q in range(5): e(f"v_mfma_f32_16x16x32_bf16 v[{64+4*q}:{67+4*q}], v[28:31], v[{32+4*q}:{35+4*q}], 0")
        e("s_nop 7")
        e("s_mul_i32 s57, s31, 5"); e("s_mul_i32 s57, s57, 14336"); e("s_lshl_b32 s58, s35, 8"); e("s_add_u32 s57, s57, s58"); e(f"s_add_u32 s57, s57, {W_D}")
        e("v_lshlrev_b32 v1, 4, v0")
        for q in range(5):
            s.pub_tile(64+4*q, "s57")
            if q < 4: e("s_add_u32 s57, s57, 14336")
        s.stamp(6)
        s.lab("L_fin")

    def gen(s):
        e = s.e
        s.L.append(f"; @launch grid=(256,1,1) block=(512,1,1) lds={LDS}")
        s.L.append('.amdgcn_target "amdgcn-amd-amdhsa--gfx950"')
        s.L += [".text", f".globl {KN}", ".p2align 8", f".type {KN},@function", f"{KN}:"]
        e("s_cmp_ge_u32 s2, 256"); e("s_cbranch_scc1 L_end")
        e("s_load_dwordx16 s[4:19], s[0:1], 0"); e("s_load_dwordx8 s[20:27], s[0:1], 64"); e("s_load_dwordx2 s[28:29], s[0:1], 104")
        e("v_lshrrev_b32 v1, 6, v0"); e("v_and_b32 v0, 63, v0"); e("v_readfirstlane_b32 s31, v1")
        e("s_lshr_b32 s32, s2, 3"); e("s_and_b32 s33, s2, 7")
        s.roles()
        s.stamp_fill(0)
        e("s_waitcnt lgkmcnt(0)")
        e("s_load_dword s30, s[28:29], 0")
        s.srd(36, 28, W_SIZE)
        e("s_cmp_ge_u32 s31, 4"); e("s_cbranch_scc1 L_help")
        s.streamer()
        e("s_branch L_tail")
        s.lab("L_help")
        s.helpers()
        s.lab("L_tail")
        s.tail()
        if s.stamps:
            s.stamp(7)
            e("s_cmp_eq_u32 s31, 4"); e("s_cbranch_scc0 L_end")
            s.stamp_write()
        s.lab("L_end"); e("s_endpgm")
        s.L += ['.section .rodata,"a"', ".p2align 6", f".amdhsa_kernel {KN}", "  .amdhsa_next_free_vgpr 256", "  .amdhsa_next_free_sgpr 102",
                "  .amdhsa_accum_offset 256", "  .amdhsa_group_segment_fixed_size 0", "  .amdhsa_kernarg_size 112", "  .amdhsa_user_sgpr_count 2",
                "  .amdhsa_user_sgpr_kernarg_segment_ptr 1", "  .amdhsa_system_sgpr_workgroup_id_x 1", ".end_amdhsa_kernel"]
        return "\n".join(s.L) + "\n"

if __name__ == "__main__":
    kw = {}
    for a in sys.argv[2:]:
        k, v = a.split("="); kw[k] = None if v == "None" else int(v)
    open(sys.argv[1], "w").write(K(**kw).gen())
```

```python
KN = "adaLN_cond__mha_block_cached__swiglu_ffn__decode_kernel"
CEXP = 0x3e0293ee
import struct, math
def f2u(x): return struct.unpack("<I", struct.pack("<f", x))[0]
C_SM = f2u(128 ** -0.5 * math.log2(math.e))
LOG2E = f2u(math.log2(math.e))
NEG = f2u(-1e30)
TAGC = 0x9E3779B9
W_CNT, W_MOD, W_Q, W_X1, W_PART, W_Y, W_D = 0x10000, 0x60000, 0x68000, 0x70000, 0x80000, 0x110000, 0x160000
W_MODP, W_QP = 0x1F0000, 0x208000
W_SIZE = 0x250000
L_WQ = 0; L_MODS = 20480; L_MOD2 = 40960; L_WO = 61440
L_GATE = 20480; L_UP = 61440; L_DOWN = 102400
L_ACT = 143360; L_H = L_ACT + 2560; L_Q = L_H + 2560; L_ST = L_Q + 512; L_OH = L_ST + 4352; L_GU = L_OH + 512; L_AC = L_GU + 1024
L_END = L_AC + 128
L_ST2 = 0
L_ACTA = L_OH
LDS = 159744
assert L_END <= LDS
SPIN = 60000

class G:
    def __init__(s, NB=3, PACE=8, stamps=False, mode="full", sw=4, late=0, **kw):
        s.L = []; s.NB = NB; s.PACE = PACE; s.stamps = stamps; s.mode = mode; s.n = 0; s.sw = sw; s.late = late; s.o = kw
    def e(s, x): s.L.append("  " + x)
    def lab(s, x): s.L.append(x + ":")
    def uniq(s, p): s.n += 1; return f"{p}_{s.n}"
    def srd(s, d, p, size):
        s.e(f"s_mov_b32 s{d}, s{p}"); s.e(f"s_and_b32 s{d+1}, s{p+1}, 0xffff")
        s.e(f"s_mov_b32 s{d+2}, {hex(size)}"); s.e(f"s_mov_b32 s{d+3}, 0x20000")
    def stamp(s, k):
        if s.stamps:
            s.e("s_memrealtime s[90:91]"); s.e("s_waitcnt lgkmcnt(0)"); s.e(f"s_mov_b32 s{80+k}, s90")
    def stamp_fill(s, k):
        if s.stamps:
            s.e("s_memrealtime s[90:91]"); s.e("s_waitcnt lgkmcnt(0)")
            for j in range(k, 8): s.e(f"s_mov_b32 s{80+j}, s90")
    def stamp_write(s):
        if s.stamps:
            s.e("s_add_u32 s92, s28, 0x10000000"); s.e("s_addc_u32 s93, s29, 0")
            s.e("s_lshl_b32 s94, s2, 5"); s.e("v_mov_b32 v250, s94")
            s.e("s_mov_b64 exec, 1")
            for j in range(0, 8, 2):
                s.e(f"v_mov_b32 v252, s{80+j}"); s.e(f"v_mov_b32 v253, s{81+j}")
                s.e(f"global_store_dwordx2 v250, v[252:253], s[92:93] offset:{j*4}")
                s.e("s_nop 1")
            s.e("s_mov_b64 exec, -1")
    def wred(s, op, t, src):
        e = s.e
        e("s_nop 1")
        e(f"{op}_dpp v{t}, v{src}, v{src} row_ror:8 row_mask:0xf bank_mask:0xf")
        for r in (4, 2, 1):
            e("s_nop 1"); e(f"{op}_dpp v{t}, v{t}, v{t} row_ror:{r} row_mask:0xf bank_mask:0xf")
        e("s_nop 1"); e(f"{op}_dpp v{t}, v{t}, v{t} row_bcast:15 row_mask:0xa bank_mask:0xf")
        e("s_nop 1"); e(f"{op}_dpp v{t}, v{t}, v{t} row_bcast:31 row_mask:0xc bank_mask:0xf")
    def poll(s, loads, t0, wide=4, pre=None, execs=None):
        e = s.e
        lp = s.uniq("L_poll"); dn = s.uniq("L_polld")
        e(f"s_mov_b32 s56, {SPIN}")
        s.lab(lp)
        for k, (d, vo, so, imm) in enumerate(loads):
            if execs and execs.get(k): e("s_mov_b32 exec_lo, -1"); e("s_mov_b32 exec_hi, 0")
            off = f" offset:{imm}" if imm else ""
            e(f"buffer_load_dwordx{wide} v[{d}:{d+wide-1}], v{vo}, s[36:39], {so} offen{off} sc1")
            if execs and execs.get(k): e("s_mov_b64 exec, -1")
        e("s_waitcnt vmcnt(0)")
        tags = [d+q for (d, vo, so, imm) in loads for q in range(1, wide, 2)]
        if len(tags) <= 2:
            e(f"v_xor_b32 v{t0}, s30, v{tags[0]}")
            if len(tags) == 2: e(f"v_xor_b32 v{t0+1}, s30, v{tags[1]}"); e(f"v_or_b32 v{t0}, v{t0}, v{t0+1}")
        else:
            e(f"v_max3_u32 v{t0}, s30, v{tags[0]}, v{tags[1]}"); e(f"v_min3_u32 v{t0+1}, s30, v{tags[0]}, v{tags[1]}")
            r = tags[2:]
            while r:
                a = r[0]; b = r[1] if len(r) > 1 else r[0]; r = r[2:]
                e(f"v_max3_u32 v{t0}, v{t0}, v{a}, v{b}"); e(f"v_min3_u32 v{t0+1}, v{t0+1}, v{a}, v{b}")
            e(f"v_xor_b32 v{t0}, v{t0}, v{t0+1}")
        e(f"v_cmp_ne_u32 vcc, 0, v{t0}")
        e("s_sub_u32 s56, s56, 1")
        e("s_cmp_eq_u32 s56, 0"); e(f"s_cbranch_scc1 {dn}")
        e("s_and_b64 vcc, exec, vcc")
        e(f"s_cbranch_vccnz {lp}")
        s.lab(dn)
    def dma(s, n, voff, srd, sreg, step, ldsbase, nt=False):
        e = s.e
        nt = True
        for i in range(n):
            e(f"s_mov_b32 m0, {ldsbase + i*1024}")
            if i: e(f"s_add_u32 s{sreg}, s{sreg}, {step}")
            else: e("s_nop 0")
            e(f"buffer_load_dwordx4 v{voff}, s[{srd}:{srd+3}], s{sreg} offen" + (" nt" if nt else "") + " lds")
    def gemv(s, acc, va, vb, RB, steps, r0, batch=10, astep=64, zero=True):
        e = s.e
        k = 0; first = zero
        while k < steps:
            nb = min(batch, steps - k)
            for j in range(nb):
                r = r0 + j*8; st = k + j
                e(f"ds_read_b128 v[{r}:{r+3}], v{va} offset:{st*astep}")
                e(f"ds_read_b64_tr_b16 v[{r+4}:{r+5}], v{vb} offset:{st*32*RB}")
                e(f"ds_read_b64_tr_b16 v[{r+6}:{r+7}], v{vb} offset:{st*32*RB + 4*RB}")
            e("s_waitcnt lgkmcnt(0)")
            for j in range(nb):
                r = r0 + j*8
                c = "0" if first else f"v[{acc}:{acc+3}]"; first = False
                e(f"v_mfma_f32_16x16x32_bf16 v[{acc}:{acc+3}], v[{r}:{r+3}], v[{r+4}:{r+7}], {c}")
            k += nb
        e("s_nop 7")
    def gemv4(s, acc, va, vb, RB, steps, r0):
        e = s.e
        for st in range(steps):
            r = r0 + st*20
            e(f"ds_read_b128 v[{r}:{r+3}], v{va} offset:{st*64}")
            for q in range(4):
                e(f"ds_read_b64_tr_b16 v[{r+4+4*q}:{r+5+4*q}], v{vb} offset:{st*32*RB + q*32}")
                e(f"ds_read_b64_tr_b16 v[{r+6+4*q}:{r+7+4*q}], v{vb} offset:{st*32*RB + 4*RB + q*32}")
        for st in range(steps):
            r = r0 + st*20
            e(f"s_waitcnt lgkmcnt({min(15, (steps-1-st)*9)})")
            for q in range(4):
                c = "0" if st == 0 else f"v[{acc+4*q}:{acc+4*q+3}]"
                e(f"v_mfma_f32_16x16x32_bf16 v[{acc+4*q}:{acc+4*q+3}], v[{r}:{r+3}], v[{r+4+4*q}:{r+7+4*q}], {c}")
        e("s_nop 7")
    def gemv_addr(s, va, vb, abase, arow, bbase, RB, t):
        e = s.e
        e(f"v_and_b32 v{t}, 1, v0"); e(f"v_mul_u32_u24 v{va}, {arow}, v{t}")
        e(f"v_lshrrev_b32 v{t}, 4, v0"); e(f"v_lshl_add_u32 v{va}, v{t}, 4, v{va}")
        e(f"v_add_u32 v{va}, {abase}, v{va}")
        e(f"v_lshlrev_b32 v{vb}, 3, v{t}")
        e(f"v_bfe_u32 v{t}, v0, 2, 2"); e(f"v_add_u32 v{vb}, v{vb}, v{t}")
        e(f"v_mul_u32_u24 v{vb}, {RB}, v{vb}")
        e(f"v_and_b32 v{t}, 3, v0"); e(f"v_lshl_add_u32 v{vb}, v{t}, 3, v{vb}")
        if isinstance(bbase, int): e(f"v_add_u32 v{vb}, {bbase}, v{vb}")
        else: e(f"v_add_u32 v{vb}, {bbase}, v{vb}")
    def unpack(s, lo, hi, src):
        s.e(f"v_and_b32 v{hi}, 0xffff0000, v{src}"); s.e(f"v_lshlrev_b32 v{lo}, 16, v{src}")
    def rnd2(s, a, b, t):
        s.e(f"v_cvt_pk_bf16_f32 v{t}, v{a}, v{b}"); s.unpack(a, b, t)

    def save_state(s, bexpr):
        e = s.e
        e("s_lshl_b32 s57, s31, 1"); e(f"s_add_u32 s57, s57, {bexpr}"); e("s_mul_i32 s57, s57, 544"); e(f"s_add_u32 s57, s57, {L_ST}")
        s.wred("v_add_f32", 14, 13)
        e("v_lshrrev_b32 v15, 4, v0"); e("v_lshlrev_b32 v15, 7, v15"); e("v_and_b32 v1, 15, v0"); e("v_lshl_add_u32 v15, v1, 2, v15")
        e("v_add_u32 v15, s57, v15")
        e("s_mov_b32 exec_lo, 0x00ff00ff"); e("s_mov_b32 exec_hi, 0x00ff00ff")
        for r in range(4): e(f"ds_write_b32 v15, v{16+r} offset:{r*32}")
        e("s_mov_b32 exec_lo, 0"); e("s_mov_b32 exec_hi, 0x80000000")
        e("v_mov_b32 v13, v14"); e("v_mov_b32 v15, s57")
        e("ds_write_b64 v15, v[12:13] offset:512")
        e("s_mov_b64 exec, -1")
    def init_state(s):
        e = s.e
        e(f"v_mov_b32 v12, {hex(NEG)}"); e("v_mov_b32 v13, 0")
        for r in range(4): e(f"v_mov_b32 v{16+r}, 0")
    def load_q(s, b):
        e = s.e
        e("v_bfe_u32 v14, v0, 2, 2"); e("v_lshrrev_b32 v15, 4, v0"); e("v_lshl_add_u32 v14, v15, 2, v14"); e("v_lshlrev_b32 v14, 4, v14")
        e(f"v_add_u32 v14, {L_Q + b*256}, v14")
        e(f"ds_read_b128 v[28:31], v14")
        e("v_and_b32 v15, 3, v0")
        e("s_waitcnt lgkmcnt(0)")
        for t in range(4):
            e(f"v_cmp_eq_u32 vcc, {t}, v15"); e("s_nop 1")
            for r in range(4): e(f"v_cndmask_b32 v{40+4*t+r}, 0, v{28+r}, vcc")
    def tile_loads(s, j, treg, dummy=False):
        e = s.e
        e(f"s_lshr_b32 s52, s{treg}, 9"); e("s_lshl_b32 s52, s52, 5"); e("s_add_u32 s52, s52, s32"); e("s_lshl_b32 s52, s52, 22")
        e(f"s_and_b32 s53, s{treg}, 511"); e("s_lshl_b32 s53, s53, 13"); e("s_add_u32 s52, s52, s53"); e("s_add_u32 s53, s52, 4096")
        base = 64 + 64*j
        for u in range(8):
            r = base + 4*u
            e(f"buffer_load_dwordx4 v[{r}:{r+3}], v2, s[40:43], s{52 + u//4} offen offset:{(u%4)*1024} nt")
        for u in range(8):
            r = base + 32 + 4*u
            e(f"buffer_load_dwordx4 v[{r}:{r+3}], v3, s[44:47], s{52 + u//4} offen offset:{(u%4)*1024} nt")
        if dummy:
            e("buffer_load_dword v8, v3, s[40:43], s52 offen nt")
        else:
            e(f"v_mov_b32 v{5+j}, 1"); e("s_mov_b64 exec, 1")
            e(f"buffer_atomic_add v{5+j}, v4, s[36:39], 0 offen sc0")
            e("s_mov_b64 exec, -1")
    def consume(s, j):
        e = s.e
        base = 64 + 64*j
        if s.o.get("nocomp"): return
        for t in range(4):
            for a in range(2):
                u = 4*a + t; r = base + 4*u; acc = 20 + 4*a
                c = "0" if t == 0 else f"v[{acc}:{acc+3}]"
                e(f"v_mfma_f32_16x16x32_bf16 v[{acc}:{acc+3}], v[{r}:{r+3}], v[{40+4*t}:{43+4*t}], {c}")
        e("s_nop 7")
        D = "row_mask:0xf"
        e(f"v_add_f32_dpp v9, v21, v20 row_ror:12 {D} bank_mask:0x1")
        e(f"v_add_f32_dpp v9, v24, v25 row_ror:4 {D} bank_mask:0x2")
        e(f"v_add_f32_dpp v9, v22, v9 row_ror:8 {D} bank_mask:0x1")
        e(f"v_add_f32_dpp v9, v26, v9 row_ror:12 {D} bank_mask:0x2")
        e(f"v_add_f32_dpp v9, v23, v9 row_ror:4 {D} bank_mask:0x1")
        e(f"v_add_f32_dpp v9, v27, v9 row_ror:8 {D} bank_mask:0x2")
        s.wred("v_max_f32", 14, 9)
        e("s_nop 0"); e("v_readlane_b32 s54, v14, 63"); e("s_nop 1")
        e("v_max_f32 v14, s54, v12")
        e("v_sub_f32 v15, v12, v14"); e("v_sub_f32 v10, v9, v14")
        e("v_mul_f32 v15, s55, v15"); e("v_mul_f32 v10, s55, v10")
        e("v_exp_f32 v15, v15"); e("v_exp_f32 v10, v10")
        e("v_mov_b32 v12, v14")
        e("v_fma_f32 v13, v13, v15, v10")
        for r in range(4): e(f"v_mul_f32 v{16+r}, v{16+r}, v15")
        e("v_cvt_pk_bf16_f32 v10, v10, v10")
        e("s_nop 1")
        def ands(u):
            b = 28 + 4*(u & 1)
            for r in range(4): e(f"v_and_b32_dpp v{b+r}, v10, v{36+r} row_newbcast:{u} row_mask:0xf bank_mask:0xf")
        ands(0)
        for u in range(8):
            if u < 7: ands(u+1)
            else: e("s_nop 1")
            r = base + 32 + 4*u; b = 28 + 4*(u & 1)
            e(f"v_mfma_f32_16x16x32_bf16 v[16:19], v[{r}:{r+3}], v[{b}:{b+3}], v[16:19]")
    def streamer(s):
        e = s.e; NB = s.NB
        s.srd(40, 6, 0x10000000); s.srd(44, 8, 0x10000000)
        e("v_bfe_u32 v1, v0, 2, 2"); e("v_lshlrev_b32 v2, 8, v1")
        e("v_and_b32 v1, 3, v0"); e("v_lshl_add_u32 v2, v1, 4, v2")
        e("v_lshrrev_b32 v1, 4, v0"); e("v_lshl_add_u32 v2, v1, 6, v2")
        e("v_lshlrev_b32 v3, 4, v0")
        if s.o.get("klin"): e("v_mov_b32 v2, v3")
        e("s_lshl_b32 s57, s33, 2"); e("s_add_u32 s57, s57, s31")
        def prologue(j0, j1):
            for j in range(j0, j1): s.tile_loads(j, 60+j, dummy=True)
        for j in range(NB): e(f"s_add_u32 s{60+j}, s57, {32*j}")
        p0 = s.o.get("p0", 1); p1 = s.o.get("p1", 1)
        e("s_barrier")
        prologue(0, p0)
        e(f"s_lshl_b32 s58, s32, 13"); e(f"s_add_u32 s58, s58, {W_CNT}"); e("v_mov_b32 v4, s58")
        for j in range(NB):
            e(f"s_add_u32 s58, s57, {(32*(NB+j) - 2*NB*32) & 0xffffffff}"); e(f"v_mov_b32 v{5+j}, s58")
        e("v_and_b32 v1, 15, v0")
        for r in range(4): e(f"v_mov_b32 v{36+r}, 0")
        e("v_mov_b32 v14, 0xffff"); e("v_mov_b32 v15, 0xffff0000")
        for r in range(4):
            e(f"v_cmp_eq_u32 vcc, {2*r}, v1"); e("s_nop 1"); e(f"v_cndmask_b32 v{36+r}, v{36+r}, v14, vcc")
            e(f"v_cmp_eq_u32 vcc, {2*r+1}, v1"); e("s_nop 1"); e(f"v_cndmask_b32 v{36+r}, v{36+r}, v15, vcc")
        e(f"v_mov_b32 v9, {hex(NEG)}")
        s.init_state()
        e(f"s_mov_b32 s55, {hex(C_SM)}")
        e("s_mov_b32 s59, 0")
        e("s_mov_b32 s64, 0")
        e("s_waitcnt lgkmcnt(0)"); e(f"s_add_u32 s30, s30, {hex(TAGC)}")
        e("s_barrier")
        prologue(p0, p0+p1)
        e("s_barrier")
        prologue(p0+p1, NB)
        s.load_q(0)
        s.lab("L_stream")
        for j in range(NB):
            s.lab(f"L_pos{j}")
            e(f"s_waitcnt vmcnt({(NB-1)*17})")
            e("s_cmp_eq_u32 s64, 0"); e(f"s_cbranch_scc1 L_nd{j}")
            e("s_waitcnt vmcnt(0)")
            s.lab(f"L_nd{j}")
            e(f"s_lshr_b32 s57, s{60+j}, 9"); e("s_cmp_lg_u32 s57, s59"); e(f"s_cbranch_scc1 L_sw{j}")
            s.lab(f"L_swr{j}")
            e(f"v_readfirstlane_b32 s58, v{5+j}")
            s.consume(j)
            e("s_cmp_eq_u32 s64, 0"); e(f"s_cbranch_scc0 L_dr{j}")
            e(f"s_add_u32 s{60+j}, s58, {2*NB*32}")
            e(f"s_cmp_ge_u32 s{60+j}, 1024"); e(f"s_cbranch_scc1 L_stop{j}")
            s.tile_loads(j, 60+j)
            if j == NB-1: e("s_branch L_pos0")
        for j in range(NB):
            nxt = f"L_pos{(j+1) % NB}"
            s.lab(f"L_stop{j}")
            e(f"s_mov_b32 s64, {NB-1}"); e(f"s_branch {nxt}")
            s.lab(f"L_dr{j}")
            e("s_sub_u32 s64, s64, 1"); e("s_cmp_eq_u32 s64, 0"); e("s_cbranch_scc1 L_sdone")
            e(f"s_branch {nxt}")
            s.lab(f"L_sw{j}")
            s.save_state(0)
            s.init_state()
            s.load_q(1)
            e("s_mov_b32 s59, 1")
            e(f"s_branch L_swr{j}")
        s.lab("L_sdone")
        e("s_nop 7")
        s.save_state("s59")
        e("s_cmp_eq_u32 s59, 1"); e("s_cbranch_scc1 L_ssaved")
        s.init_state(); e("s_nop 1")
        s.save_state(1)
        s.lab("L_ssaved")
        e("s_waitcnt lgkmcnt(0)")
        e("s_barrier")
```

```python
import sys
from gk1 import *

class K(G):
    def lanes16(s): s.e("s_mov_b64 exec, 0xffff")
    def allx(s): s.e("s_mov_b64 exec, -1")
    def unpack_gr(s, d, g):
        s.e(f"v_lshlrev_b32 v{d}, 16, v{g}"); s.e(f"v_lshlrev_b32 v{d+1}, 16, v{g+2}")
        s.e(f"v_and_b32 v{d+2}, 0xffff0000, v{g}"); s.e(f"v_and_b32 v{d+3}, 0xffff0000, v{g+2}")
    def ln_mod(s, X, SG, CG, t):
        e = s.e
        for b in range(2):
            xs = [X + 4*j + 2*b + q for j in range(5) for q in range(2)]
            e(f"v_add_f32 v{t}, v{xs[0]}, v{xs[1]}")
            for r in xs[2:]: e(f"v_add_f32 v{t}, v{t}, v{r}")
            s.wred("v_add_f32", t+1, t)
            e("s_nop 0"); e(f"v_readlane_b32 s57, v{t+1}, 63"); e("s_nop 1")
            e(f"v_mov_b32 v{t}, s57"); e(f"v_mul_f32 v{t}, {hex(f2u(1/640))}, v{t}")
            e(f"v_sub_f32 v{t+2}, v{xs[0]}, v{t}"); e(f"v_mul_f32 v{t+3}, v{t+2}, v{t+2}")
            for r in xs[1:]:
                e(f"v_sub_f32 v{t+2}, v{r}, v{t}"); e(f"v_fma_f32 v{t+3}, v{t+2}, v{t+2}, v{t+3}")
            s.wred("v_add_f32", t+1, t+3)
            e("s_nop 0"); e(f"v_readlane_b32 s57, v{t+1}, 63"); e("s_nop 1")
            e(f"v_mov_b32 v{t+1}, s57"); e(f"v_mul_f32 v{t+1}, {hex(f2u(1/640))}, v{t+1}")
            s.rnd2(t, t+1, t+2)
            e(f"v_add_f32 v{t+1}, {hex(f2u(1e-5))}, v{t+1}"); e(f"v_mov_b32 v{t+3}, 0"); s.rnd2(t+1, t+3, t+2)
            e(f"v_sqrt_f32 v{t+1}, v{t+1}"); e("s_nop 0"); s.rnd2(t+1, t+3, t+2)
            e(f"v_rcp_f32 v{t+1}, v{t+1}"); e("s_nop 0")
            for j in range(5):
                a, c = X + 4*j + 2*b, X + 4*j + 2*b + 1
                e(f"v_sub_f32 v{a}, v{a}, v{t}"); e(f"v_sub_f32 v{c}, v{c}, v{t}"); s.rnd2(a, c, t+2)
                e(f"v_mul_f32 v{a}, v{a}, v{t+1}"); e(f"v_mul_f32 v{c}, v{c}, v{t+1}"); s.rnd2(a, c, t+2)
                sg, cg = SG + 4*j, CG + 4*j
                for (dst, g) in ((t+4, cg), (t+6, sg)):
                    if b == 0:
                        e(f"v_lshlrev_b32 v{dst}, 16, v{g}"); e(f"v_lshlrev_b32 v{dst+1}, 16, v{g+2}")
                    else:
                        e(f"v_and_b32 v{dst}, 0xffff0000, v{g}"); e(f"v_and_b32 v{dst+1}, 0xffff0000, v{g+2}")
                e(f"v_add_f32 v{t+4}, 1.0, v{t+4}"); e(f"v_add_f32 v{t+5}, 1.0, v{t+5}"); s.rnd2(t+4, t+5, t+2)
                e(f"v_mul_f32 v{a}, v{a}, v{t+4}"); e(f"v_mul_f32 v{c}, v{c}, v{t+5}"); s.rnd2(a, c, t+2)
                e(f"v_add_f32 v{a}, v{a}, v{t+6}"); e(f"v_add_f32 v{c}, v{c}, v{t+7}")
                e(f"v_cvt_pk_bf16_f32 v{t+2}, v{a}, v{c}")
                e(f"ds_write_b32 v{t+8}, v{t+2} offset:{b*1280 + j*256}")
    def silu(s, x, t):
        e = s.e
        e(f"v_mul_f32 v{t}, {hex(f2u(-math.log2(math.e)))}, v{x}"); e(f"v_exp_f32 v{t}, v{t}"); e("s_nop 0")
        e(f"v_add_f32 v{t}, 1.0, v{t}"); e(f"v_rcp_f32 v{t}, v{t}"); e("s_nop 0"); e(f"v_mul_f32 v{x}, v{x}, v{t}")
    def unit_dma(s, srd, rowb, usreg, lds):
        e = s.e
        e("v_lshrrev_b32 v1, 1, v0"); e(f"v_mul_u32_u24 v2, {rowb}, v1"); e("v_and_b32 v1, 1, v0"); e("v_lshl_add_u32 v2, v1, 4, v2")
        e(f"s_lshl_b32 s52, s{usreg}, 5")
        s.dma(20, 2, srd, 52, 32*rowb, lds)
    def unit_pub(s, acc, usreg, wbase):
        e = s.e
        e(f"v_cvt_pk_bf16_f32 v4, v{acc}, v{acc+1}"); e("v_mov_b32 v5, s30")
        e(f"s_lshl_b32 s52, s{usreg}, 7"); e(f"s_add_u32 s52, s52, {wbase}"); e("v_lshlrev_b32 v1, 3, v0")
        s.lanes16(); e("buffer_store_dwordx2 v[4:5], v1, s[36:39], s52 offen sc1"); s.allx()
    def mod_unit(s, usreg, lds, do_act):
        e = s.e
        s.srd(40, 24, 640*3840*2)
        if do_act:
            s.srd(48, 22, 2560); e("v_lshlrev_b32 v3, 2, v0")
            for b in range(2):
                for j in range(5): e(f"buffer_load_dword v{16+b*5+j}, v3, s[48:51], 0 offen offset:{b*1280+j*256}")
        s.unit_dma(40, 7680, usreg, lds)
        if do_act:
            e("s_waitcnt vmcnt(20)"); e(f"v_add_u32 v3, {L_ACT}, v3")
            for q in range(10):
                s.unpack(8, 9, 16+q); s.silu(8, 10); s.silu(9, 11)
                e("v_cvt_pk_bf16_f32 v8, v8, v9"); e(f"ds_write_b32 v3, v8 offset:{(q//5)*1280+(q%5)*256}")
        s.gemv_addr(6, 7, L_ACT, 1280, lds, 32, 1)
        e("s_waitcnt vmcnt(0) lgkmcnt(0)")
        s.gemv(12, 6, 7, 32, 20, 16)
        s.unit_pub(12, usreg, W_MOD)
    def slab64_dma(s, srd, rowb, lds):
        e = s.e
        e("v_lshrrev_b32 v1, 3, v0"); e(f"v_mul_u32_u24 v2, {rowb}, v1"); e("v_and_b32 v1, 7, v0"); e("v_lshl_add_u32 v2, v1, 4, v2")
        s.dma(20, 2, srd, 52, 8*rowb, lds)
    def pub4(s, acc, soff):
        e = s.e
        e("v_lshlrev_b32 v1, 4, v0")
        for q in range(4):
            e(f"v_mov_b32 v{200+4*q}, v{acc+4*q}"); e(f"v_mov_b32 v{201+4*q}, s30"); e(f"v_mov_b32 v{202+4*q}, v{acc+4*q+1}"); e(f"v_mov_b32 v{203+4*q}, s30")
        s.lanes16()
        for q in range(4): e(f"buffer_store_dwordx4 v[{200+4*q}:{203+4*q}], v1, s[36:39], {soff} offen offset:{q*256} sc1")
        s.allx()
    def tagwait(s):
        s.e("s_waitcnt lgkmcnt(0)"); s.e(f"s_add_u32 s30, s30, {hex(TAGC)}")
    def moda_unit(s):
        e = s.e
        s.srd(40, 24, 640*3840*2); s.srd(48, 22, 2560)
        e("s_and_b32 s66, s65, 3"); e("s_lshr_b32 s67, s65, 2")
        e("v_and_b32 v1, 31, v0"); e("v_lshrrev_b32 v3, 5, v0"); e("v_mul_u32_u24 v8, 1280, v3"); e("v_lshl_add_u32 v8, v1, 1, v8")
        e("s_mul_i32 s57, s66, 320")
        for m in range(5): e(f"buffer_load_ushort v{16+m}, v8, s[48:51], s57 offen offset:{m*64}")
        e(f"s_mul_i32 s52, s66, {160*7680}"); e("s_lshl_b32 s57, s67, 7"); e("s_add_u32 s52, s52, s57")
        s.slab64_dma(40, 7680, L_MODS)
        e("s_barrier")
        s.tagwait()
        e("v_mul_u32_u24 v8, 320, v3"); e("v_and_b32 v1, 31, v0"); e("v_lshl_add_u32 v8, v1, 1, v8"); e(f"v_add_u32 v8, {L_ACTA}, v8")
        e("s_waitcnt vmcnt(20)")
        for m in range(5):
            e(f"v_lshlrev_b32 v{16+m}, 16, v{16+m}"); s.silu(16+m, 10)
            e(f"v_cvt_pk_bf16_f32 v{16+m}, v{16+m}, v{16+m}"); e(f"ds_write_b16 v8, v{16+m} offset:{m*64}")
        s.gemv_addr(6, 7, L_ACTA, 320, L_MODS, 128, 1)
        e("s_waitcnt vmcnt(0) lgkmcnt(0)")
        s.stamp(4)
        s.gemv4(24, 6, 7, 128, 5, 40)
        e("s_mul_i32 s57, s66, 20480"); e("s_lshl_b32 s58, s67, 10"); e("s_add_u32 s57, s57, s58"); e(f"s_add_u32 s57, s57, {W_MODP}")
        s.pub4(24, "s57")
    def q_unit2(s):
        e = s.e
        s.srd(40, 10, 640*4096*2); s.srd(48, 4, 2560)
        e("s_and_b32 s66, s33, 3"); e("s_lshr_b32 s67, s33, 2")
        e("v_lshlrev_b32 v3, 2, v0")
        for b in range(2):
            for j in range(5): e(f"buffer_load_dword v{16+b*5+j}, v3, s[48:51], 0 offen offset:{b*1280+j*256}")
        e("v_lshlrev_b32 v8, 1, v0"); e("s_mul_i32 s57, s66, 320")
        for b in range(2):
            for m in range(3):
                if m == 2: e("s_mov_b32 exec_hi, 0")
                e(f"buffer_load_ushort v{26+2*m+b}, v8, s[48:51], s57 offen offset:{b*1280+m*128}")
                if m == 2: s.allx()
        e(f"s_mul_i32 s52, s66, {160*8192}"); e("s_lshl_b32 s57, s32, 8"); e("s_add_u32 s52, s52, s57"); e("s_lshl_b32 s57, s67, 7"); e("s_add_u32 s52, s52, s57")
        s.slab64_dma(40, 8192, L_WQ)
        e("s_barrier")
        s.tagwait()
        e("s_cmp_lg_u32 s33, 0"); e("s_cbranch_scc1 L_noinit")
        e("s_lshl_b32 s57, s32, 13"); e(f"s_add_u32 s57, s57, {W_CNT}")
        e("v_mov_b32 v1, 0"); e("s_mov_b64 exec, 1"); e("buffer_store_dword v1, v1, s[36:39], s57 offen sc1"); s.allx()
        e("s_waitcnt vmcnt(21)"); e("s_branch L_init2")
        s.lab("L_noinit"); e("s_waitcnt vmcnt(20)"); s.lab("L_init2")
        X = 32
        for b in range(2):
            for j in range(5): s.unpack(X+4*j+2*b, X+4*j+2*b+1, 16+b*5+j)
        for q in range(6): e(f"v_lshlrev_b32 v{26+q}, 16, v{26+q}")
        t = 52
        for b in range(2):
            xs = [X + 4*j + 2*b + q for j in range(5) for q in range(2)]
            e(f"v_add_f32 v{t}, v{xs[0]}, v{xs[1]}")
            for r in xs[2:]: e(f"v_add_f32 v{t}, v{t}, v{r}")
            s.wred("v_add_f32", t+1, t)
            e("s_nop 0"); e(f"v_readlane_b32 s57, v{t+1}, 63"); e("s_nop 1")
            e(f"v_mov_b32 v{t}, s57"); e(f"v_mul_f32 v{t}, {hex(f2u(1/640))}, v{t}")
            e(f"v_sub_f32 v{t+2}, v{xs[0]}, v{t}"); e(f"v_mul_f32 v{t+3}, v{t+2}, v{t+2}")
            for r in xs[1:]:
                e(f"v_sub_f32 v{t+2}, v{r}, v{t}"); e(f"v_fma_f32 v{t+3}, v{t+2}, v{t+2}, v{t+3}")
            s.wred("v_add_f32", t+1, t+3)
            e("s_nop 0"); e(f"v_readlane_b32 s57, v{t+1}, 63"); e("s_nop 1")
            e(f"v_mov_b32 v{t+1}, s57"); e(f"v_mul_f32 v{t+1}, {hex(f2u(1/640))}, v{t+1}")
            s.rnd2(t, t+1, t+2)
            e(f"v_add_f32 v{t+1}, {hex(f2u(1e-5))}, v{t+1}"); e(f"v_mov_b32 v{t+3}, 0"); s.rnd2(t+1, t+3, t+2)
            e(f"v_sqrt_f32 v{t+1}, v{t+1}"); e("s_nop 0"); s.rnd2(t+1, t+3, t+2)
            e(f"v_rcp_f32 v{t+1}, v{t+1}"); e("s_nop 0")
            for m in range(3):
                a = 26+2*m+b
                e(f"v_sub_f32 v{a}, v{a}, v{t}"); s.rnd2(a, t+3, t+2)
                e(f"v_mul_f32 v{a}, v{a}, v{t+1}"); s.rnd2(a, t+3, t+2)
        e("v_lshlrev_b32 v9, 4, v0"); e("s_mul_i32 s57, s66, 2560"); e(f"s_add_u32 s57, s57, {W_MODP}")
        for w in range(2):
            for k in range(4): e(f"s_add_u32 s{68+w*4+k}, s57, {w*10240 + k*20480}")
        loads = []; ex = {}
        G0 = 64
        for w in range(2):
            for k in range(4):
                for m in range(3):
                    d = G0 + ((w*4+k)*3+m)*4
                    if m == 2:
                        ex[len(loads)] = 1
                        e(f"v_mov_b32 v{d}, 0"); e(f"v_mov_b32 v{d+1}, s30"); e(f"v_mov_b32 v{d+2}, 0"); e(f"v_mov_b32 v{d+3}, s30")
                    loads.append((d, 9, f"s{68+w*4+k}", m*1024))
        e("s_waitcnt vmcnt(0)")
        if s.sw == 5: s.stamp(1)
        s.poll([loads[21]], 10); s.poll(loads, 10, execs=ex)
        e("s_barrier")
        if s.sw == 5: s.stamp(4)
        e("v_lshlrev_b32 v8, 1, v0"); e(f"v_add_u32 v8, {L_H}, v8")
        for m in range(3):
            for w in range(2):
                d = [G0 + ((w*4+k)*3+m)*4 for k in range(4)]
                for b in range(2):
                    e(f"v_add_f32 v{d[0]+2*b}, v{d[0]+2*b}, v{d[1]+2*b}"); e(f"v_add_f32 v{d[2]+2*b}, v{d[2]+2*b}, v{d[3]+2*b}")
                for b in range(2): e(f"v_add_f32 v{d[0]+2*b}, v{d[0]+2*b}, v{d[2]+2*b}")
                s.rnd2(d[0], d[0]+2, 52)
            sa = G0 + m*4; ca = G0 + (12+m)*4
            e(f"v_add_f32 v{ca}, 1.0, v{ca}"); e(f"v_add_f32 v{ca+2}, 1.0, v{ca+2}"); s.rnd2(ca, ca+2, 52)
            a = 26+2*m
            e(f"v_mul_f32 v{a}, v{a}, v{ca}"); e(f"v_mul_f32 v{a+1}, v{a+1}, v{ca+2}"); s.rnd2(a, a+1, 52)
            e(f"v_add_f32 v{a}, v{a}, v{sa}"); e(f"v_add_f32 v{a+1}, v{a+1}, v{sa+2}")
            e(f"v_cvt_pk_bf16_f32 v{a}, v{a}, v{a+1}")
            if m == 2: e("s_mov_b32 exec_hi, 0")
            e(f"ds_write_b16 v8, v{a} offset:{m*128}"); e(f"ds_write_b16_d16_hi v8, v{a} offset:{320+m*128}")
        s.allx()
        s.gemv_addr(6, 7, L_H, 320, L_WQ, 128, 1)
        e("s_waitcnt lgkmcnt(0)")
        s.gemv4(24, 6, 7, 128, 5, 64)
        e("s_lshl_b32 s57, s32, 13"); e("s_lshl_b32 s58, s66, 11"); e("s_add_u32 s57, s57, s58"); e("s_lshl_b32 s58, s67, 10"); e("s_add_u32 s57, s57, s58")
        e(f"s_add_u32 s57, s57, {W_QP}")
        s.pub4(24, "s57")
        if s.sw == 5: s.stamp(5)
        e("s_lshl_b32 s57, s32, 13"); e(f"s_add_u32 s57, s57, {W_QP}"); e("s_add_u32 s58, s57, 4096")
        loads = [(64+(k*2+hf)*4, 9, "s57" if k < 2 else "s58", (k % 2)*2048 + hf*1024) for k in range(4) for hf in range(2)]
        s.poll(loads, 10)
        if s.sw == 5: s.stamp(6)
        e("v_lshlrev_b32 v3, 1, v0"); e(f"v_add_u32 v3, {L_Q}, v3")
        for hf in range(2):
            d = [64+(k*2+hf)*4 for k in range(4)]
            for b in range(2):
                e(f"v_add_f32 v{d[0]+2*b}, v{d[0]+2*b}, v{d[1]+2*b}"); e(f"v_add_f32 v{d[2]+2*b}, v{d[2]+2*b}, v{d[3]+2*b}")
            for b in range(2): e(f"v_add_f32 v{d[0]+2*b}, v{d[0]+2*b}, v{d[2]+2*b}")
            e(f"v_cvt_pk_bf16_f32 v{d[0]}, v{d[0]}, v{d[0]+2}")
            e(f"ds_write_b16 v3, v{d[0]} offset:{hf*128}"); e(f"ds_write_b16_d16_hi v3, v{d[0]} offset:{256+hf*128}")
        e("s_waitcnt lgkmcnt(0)")
    def q_unit(s):
        e = s.e
        e("s_lshl_b32 s65, s33, 5"); e("s_add_u32 s65, s65, s32")
        s.srd(40, 10, 640*4096*2); s.srd(48, 4, 2560)
        e("s_and_b32 s57, s65, 7"); e("s_cmp_lg_u32 s57, 0"); e("s_cbranch_scc1 L_noinit")
        e("s_lshl_b32 s57, s65, 10"); e(f"s_add_u32 s57, s57, {W_CNT}")
        e("v_mov_b32 v1, 0"); e("s_mov_b64 exec, 1"); e("buffer_store_dword v1, v1, s[36:39], s57 offen sc1"); s.allx()
        s.lab("L_noinit")
        e("v_lshlrev_b32 v3, 2, v0")
        for b in range(2):
            for j in range(5): e(f"buffer_load_dword v{16+b*5+j}, v3, s[48:51], 0 offen offset:{b*1280+j*256}")
        s.unit_dma(40, 8192, 65, L_WQ)
        e("s_waitcnt vmcnt(20)")
        X = 32
        for b in range(2):
            for j in range(5): s.unpack(X+4*j+2*b, X+4*j+2*b+1, 16+b*5+j)
        e("v_lshlrev_b32 v9, 4, v0")
        for j in range(5): e(f"s_mov_b32 s{66+j}, {W_MOD + j*1024}")
        for j in range(5): e(f"s_mov_b32 s{72+j}, {W_MOD + 5120 + j*1024}")
        e("s_waitcnt vmcnt(0)")
        if s.sw == 5: s.stamp(1)
        loads = [(64+4*j, 9, f"s{66+j}", 0) for j in range(5)] + [(84+4*j, 9, f"s{72+j}", 0) for j in range(5)]
        s.poll(loads[9:], 10); s.poll(loads, 10)
        if s.sw == 5: s.stamp(4)
        e(f"v_lshlrev_b32 v28, 2, v0"); e(f"v_add_u32 v28, {L_H}, v28")
        s.ln_mod(X, 64, 84, 20)
        s.gemv_addr(6, 7, L_H, 1280, L_WQ, 32, 1)
        e("s_waitcnt lgkmcnt(0)")
        s.gemv(12, 6, 7, 32, 20, 104)
        s.unit_pub(12, 65, W_Q)
        if s.sw == 5: s.stamp(5)
        e("s_lshl_b32 s57, s32, 10"); e(f"s_add_u32 s57, s57, {W_Q}")
        s.poll([(16, 9, "s57", 0)], 10)
        if s.sw == 5: s.stamp(6)
        e("v_and_b32 v20, 0xffff, v16"); e("v_lshl_or_b32 v20, v18, 16, v20")
        e("v_lshrrev_b32 v21, 16, v16"); e("v_and_b32 v22, 0xffff0000, v18"); e("v_or_b32 v21, v21, v22")
        e("v_lshlrev_b32 v3, 2, v0"); e(f"v_add_u32 v3, {L_Q}, v3")
        e("ds_write_b32 v3, v20"); e("ds_write_b32 v3, v21 offset:256")
        e("s_waitcnt lgkmcnt(0)")
    def combine(s, base, np_):
        e = s.e
        e("s_mul_i32 s58, s57, 544"); e(f"s_add_u32 s58, s58, {base}")
        e("v_lshlrev_b32 v1, 3, v0"); e("v_add_u32 v1, s58, v1"); e("v_mov_b32 v2, s58")
        for p in range(np_):
            e(f"ds_read_b64 v[{32+2*p}:{33+2*p}], v1 offset:{p*1088}")
            e(f"ds_read_b64 v[{64+2*p}:{65+2*p}], v2 offset:{p*1088+512}")
        e("s_waitcnt lgkmcnt(0)")
        e("v_max_f32 v18, v64, v66")
        for p in range(2, np_): e(f"v_max_f32 v18, v18, v{64+2*p}")
        e(f"s_mov_b32 s55, {hex(C_SM)}")
        for p in range(np_):
            e(f"v_sub_f32 v{64+2*p}, v{64+2*p}, v18"); e(f"v_mul_f32 v{64+2*p}, s55, v{64+2*p}"); e(f"v_exp_f32 v{64+2*p}, v{64+2*p}")
        e("s_nop 0")
        e("v_mul_f32 v16, v32, v64"); e("v_mul_f32 v17, v33, v64"); e("v_mul_f32 v19, v65, v64")
        for p in range(1, np_):
            e(f"v_fma_f32 v16, v{32+2*p}, v{64+2*p}, v16"); e(f"v_fma_f32 v17, v{33+2*p}, v{64+2*p}, v17"); e(f"v_fma_f32 v19, v{65+2*p}, v{64+2*p}, v19")
    def pub_tile(s, acc, soff):
        e = s.e
        e(f"v_mov_b32 v4, v{acc}"); e("v_mov_b32 v5, s30"); e(f"v_mov_b32 v6, v{acc+1}"); e("v_mov_b32 v7, s30")
        s.lanes16(); e(f"buffer_store_dwordx4 v[4:7], v1, s[36:39], {soff} offen sc1"); s.allx(); e("s_nop 1")
    def xrow_sum(s, r, t):
        e = s.e
        e(f"ds_bpermute_b32 v{t+2}, v{t}, v{r}"); e("s_waitcnt lgkmcnt(0)"); e(f"v_add_f32 v{r}, v{r}, v{t+2}")
        e(f"ds_bpermute_b32 v{t+2}, v{t+1}, v{r}"); e("s_waitcnt lgkmcnt(0)"); e(f"v_add_f32 v{r}, v{r}, v{t+2}")

    def roles(s):
        e = s.e
        e("s_mov_b32 s34, 0"); e("s_mov_b32 s35, 0")
        e("s_cmp_lt_u32 s33, 5"); e("s_cbranch_scc1 L_roled")
        e("s_mov_b32 s34, 1"); e("s_mov_b32 s35, s32")
        e("s_cmp_eq_u32 s33, 5"); e("s_cbranch_scc1 L_roled")
        e("s_mov_b32 s34, 2")
        e("s_cmp_eq_u32 s33, 7"); e("s_cbranch_scc1 L_roled")
        e("s_mov_b32 s34, 1"); e("s_add_u32 s35, s32, 32")
        e("s_cmp_lt_u32 s32, 22"); e("s_cbranch_scc1 L_roled")
        e("s_mov_b32 s34, 2"); e("s_add_u32 s35, s32, 10")
        e("s_cmp_lt_u32 s32, 30"); e("s_cbranch_scc1 L_roled")
        e("s_mov_b32 s34, 3")
        s.lab("L_roled")

    def helpers(s):
        e = s.e
        e("s_cmp_eq_u32 s31, 5"); e("s_cbranch_scc1 L_hq")
        e("s_cmp_eq_u32 s31, 4"); e("s_cbranch_scc0 L_hb0")
        e("s_cmp_lt_u32 s33, 5"); e("s_cbranch_scc0 L_hb0")
        e("s_cmp_lt_u32 s32, 16"); e("s_cbranch_scc0 L_hb0")
        e("s_lshl_b32 s65, s33, 4"); e("s_add_u32 s65, s65, s32")
        s.moda_unit()
        s.stamp(1)
        e("s_branch L_hba")
        s.lab("L_hq"); s.q_unit2(); e("s_branch L_hb1")
        s.lab("L_hb0"); e("s_barrier"); s.tagwait()
        s.lab("L_hba"); e("s_barrier")
        s.lab("L_hb1")
        e("s_barrier")
        s.stamp(2)
        e("s_cmp_eq_u32 s31, 4"); e("s_cbranch_scc1 L_h4")
        if s.o.get("notail"): e("s_cmp_eq_u32 s34, 0"); e("s_cbranch_scc0 L_hb2"); e("s_cmp_eq_u32 s31, 6"); e("s_cbranch_scc0 L_hb2")
        e("s_cmp_eq_u32 s34, 1"); e("s_cbranch_scc1 L_hffn")
        e("s_cmp_eq_u32 s34, 0"); e("s_cbranch_scc0 L_hb2")
        e("s_cmp_eq_u32 s31, 7"); e("s_cbranch_scc1 L_hwo")
        e("s_cmp_eq_u32 s31, 6"); e("s_cbranch_scc0 L_hb2")
        e("s_lshl_b32 s65, s33, 5"); e("s_add_u32 s65, s65, s32"); e("s_add_u32 s65, s65, 80")
        s.mod_unit(65, L_MOD2, True)
        e("s_branch L_hb2")
        s.lab("L_hwo")
        s.srd(40, 12, 4096*640*2)
        e("v_lshrrev_b32 v1, 4, v0"); e("v_mul_u32_u24 v2, 1280, v1"); e("v_and_b32 v1, 15, v0"); e("v_lshl_add_u32 v2, v1, 4, v2")
        e("s_mul_i32 s52, s32, 163840"); e("s_lshl_b32 s57, s33, 8"); e("s_add_u32 s52, s52, s57")
        s.dma(32, 2, 40, 52, 4*1280, L_WO, nt=True)
        e("s_branch L_hb2")
        s.lab("L_hffn")
        e("s_cmp_eq_u32 s31, 7"); e("s_cbranch_scc1 L_hdown")
        e("s_cmp_eq_u32 s31, 5"); e("s_cselect_b32 s40, s16, s18"); e("s_cselect_b32 s41, s17, s19")
        e(f"s_mov_b32 s53, {L_UP}"); e(f"s_cselect_b32 s53, {L_GATE}, s53")
        e("s_and_b32 s41, s41, 0xffff"); e(f"s_mov_b32 s42, {640*1728*2}"); e("s_mov_b32 s43, 0x20000")
        e("v_lshrrev_b32 v1, 2, v0"); e("v_mul_u32_u24 v2, 3456, v1"); e("v_and_b32 v1, 3, v0"); e("v_lshl_add_u32 v2, v1, 4, v2")
        e("s_lshl_b32 s52, s35, 6")
        for i in range(40):
            e("s_mov_b32 m0, s53")
            e("s_nop 0")
            e("buffer_load_dwordx4 v2, s[40:43], s52 offen" + " nt" + " lds")
            e("s_add_u32 s53, s53, 1024"); e(f"s_add_u32 s52, s52, {16*3456}")
        e("s_branch L_hb2")
        s.lab("L_hdown")
        s.srd(40, 20, 1728*640*2)
        e("v_lshlrev_b32 v2, 4, v0"); e("s_mul_i32 s52, s35, 40960")
        s.dma(40, 2, 40, 52, 1024, L_DOWN, nt=True)
        e("s_branch L_hb2")
        s.lab("L_h4")
        e("s_cmp_eq_u32 s34, 1"); e("s_cbranch_scc1 L_h4f")
        e("s_cmp_eq_u32 s34, 2"); e("s_cbranch_scc0 L_hb2")
        s.srd(48, 4, 2560)
        e("v_and_b32 v1, 15, v0"); e("v_lshlrev_b32 v9, 3, v1"); e("v_lshlrev_b32 v8, 1, v1")
        e("s_lshl_b32 s57, s35, 5")
        e("buffer_load_ushort v204, v8, s[48:51], s57 offen"); e("buffer_load_ushort v205, v8, s[48:51], s57 offen offset:1280")
        e("s_lshl_b32 s57, s35, 7"); e(f"s_add_u32 s58, s57, {W_MOD + 1280*8}"); e(f"s_add_u32 s57, s57, {W_MOD + 3200*8}")
        s.poll([(200, 9, "s58", 0), (202, 9, "s57", 0)], 10, wide=2)
        e("v_lshlrev_b32 v204, 16, v204"); e("v_lshlrev_b32 v205, 16, v205")
        e("s_branch L_hb2")
        s.lab("L_h4f")
        e("v_lshlrev_b32 v9, 4, v0")
        for j in range(5): e(f"s_mov_b32 s{68+j}, {W_MOD + 1920*8 + j*1024}")
        for j in range(5): e(f"s_mov_b32 s{74+j}, {W_MOD + 2560*8 + j*1024}")
        loads = [(160+4*j, 9, f"s{68+j}", 0) for j in range(5)] + [(180+4*j, 9, f"s{74+j}", 0) for j in range(5)]
        s.poll(loads[9:], 10); s.poll(loads, 10)
        s.lab("L_hb2")
        e("s_waitcnt vmcnt(0) lgkmcnt(0)")
        e("s_barrier")

    def tail(s):
        e = s.e
        s.stamp(3)
        e("s_cmp_lt_u32 s31, 2"); e("s_cbranch_scc0 L_t1d")
        e("s_mov_b32 s57, s31")
        s.combine(L_ST, 4)
        e("s_lshl_b32 s58, s2, 1"); e("s_add_u32 s58, s58, s31"); e("s_mul_i32 s58, s58, 1088"); e(f"s_add_u32 s58, s58, {W_PART}")
        e("v_mov_b32 v4, v16"); e("v_mov_b32 v5, s30"); e("v_mov_b32 v6, v17"); e("v_mov_b32 v7, s30"); e("v_lshlrev_b32 v1, 4, v0")
        e("buffer_store_dwordx4 v[4:7], v1, s[36:39], s58 offen sc1")
        e("v_mov_b32 v8, v18"); e("v_mov_b32 v9, s30"); e("v_mov_b32 v10, v19"); e("v_mov_b32 v11, s30"); e("v_mov_b32 v1, 0")
        e("s_mov_b64 exec, 1"); e("buffer_store_dwordx4 v[8:11], v1, s[36:39], s58 offen offset:1024 sc1"); s.allx()
        s.lab("L_t1d")
        e("s_cmp_eq_u32 s34, 0"); e("s_cbranch_scc1 L_t2")
        e("s_cmp_eq_u32 s34, 1"); e("s_cbranch_scc1 L_t4")
        e("s_cmp_eq_u32 s34, 2"); e("s_cbranch_scc0 L_fin")
        e("s_cmp_eq_u32 s31, 4"); e("s_cbranch_scc0 L_fin")
        e("v_lshlrev_b32 v9, 4, v0")
        e("v_xor_b32 v12, 16, v0"); e("v_lshlrev_b32 v12, 2, v12"); e("v_xor_b32 v13, 32, v0"); e("v_lshlrev_b32 v13, 2, v13")
        e("s_lshl_b32 s57, s35, 13"); e(f"s_add_u32 s57, s57, {W_Y}"); e("s_add_u32 s58, s57, 4096")
        s.poll([(32+4*i, 9, "s57" if i < 4 else "s58", (i % 4)*1024) for i in range(8)], 10)
        s.stamp(4)
        e("v_mov_b32 v16, v32"); e("v_mov_b32 v17, v34")
        for i in range(1, 8): e(f"v_add_f32 v16, v16, v{32+4*i}"); e(f"v_add_f32 v17, v17, v{34+4*i}")
        s.xrow_sum(16, 12); s.xrow_sum(17, 12)
        s.rnd2(16, 17, 18)
        s.unpack(19, 20, 200)
        e("v_mul_f32 v16, v16, v19"); e("v_mul_f32 v17, v17, v20"); s.rnd2(16, 17, 18)
        e("v_add_f32 v204, v204, v16"); e("v_add_f32 v205, v205, v17")
        e("v_cvt_pk_bf16_f32 v4, v204, v205"); e("v_mov_b32 v5, s30")
        e("s_lshl_b32 s57, s35, 7"); e(f"s_add_u32 s57, s57, {W_X1}"); e("v_lshlrev_b32 v1, 3, v0")
        s.lanes16(); e("buffer_store_dwordx2 v[4:5], v1, s[36:39], s57 offen sc1"); s.allx()
        s.unpack(204, 205, 4)
        s.stamp(5)
        e("s_mul_i32 s57, s35, 14336"); e(f"s_add_u32 s57, s57, {W_D}")
        for q in range(1, 4): e(f"s_add_u32 s{57+q}, s57, {4096*q}")
        e("v_mov_b32 v84, 0"); e("v_mov_b32 v85, s30"); e("v_mov_b32 v86, 0"); e("v_mov_b32 v87, s30")
        s.poll([(32+4*i, 9, f"s{57 + i//4}", (i % 4)*1024) for i in range(14)], 10, execs={13: "0xffffffff"})
        s.stamp(6)
        e("v_mov_b32 v16, v32"); e("v_mov_b32 v17, v34")
        for i in range(1, 14): e(f"v_add_f32 v16, v16, v{32+4*i}"); e(f"v_add_f32 v17, v17, v{34+4*i}")
        s.xrow_sum(16, 12); s.xrow_sum(17, 12)
        s.rnd2(16, 17, 18)
        s.unpack(19, 20, 202)
        e("v_mul_f32 v16, v16, v19"); e("v_mul_f32 v17, v17, v20"); s.rnd2(16, 17, 18)
        e("v_add_f32 v16, v204, v16"); e("v_add_f32 v17, v205, v17")
        e("v_cvt_pk_bf16_f32 v4, v16, v17")
        s.srd(48, 26, 2560)
        e("v_lshlrev_b32 v1, 1, v0"); e("s_lshl_b32 s57, s35, 5")
        s.lanes16()
        e("buffer_store_short v4, v1, s[48:51], s57 offen")
        e("buffer_store_short_d16_hi v4, v1, s[48:51], s57 offen offset:1280")
        s.allx()
        e("s_cmp_eq_u32 s35, 0"); e("s_cbranch_scc0 L_fin")
        e("v_mov_b32 v1, 0"); e("v_mov_b32 v4, s30"); e("s_mov_b64 exec, 1")
        e("buffer_store_dword v4, v1, s[36:39], 0 offen sc1"); s.allx()
        e("s_branch L_fin")
        s.lab("L_t2")
        e("s_lshl_b32 s57, s32, 3"); e("s_add_u32 s57, s57, s31"); e("s_mul_i32 s57, s57, 2176"); e(f"s_add_u32 s57, s57, {W_PART}")
        e("s_add_u32 s58, s57, 1088")
        e("v_lshlrev_b32 v9, 4, v0"); e("v_mov_b32 v8, 0")
        s.poll([(32, 9, "s57", 0), (36, 8, "s57", 1024), (40, 9, "s58", 0), (44, 8, "s58", 1024)], 10)
        e("s_mul_i32 s57, s31, 1088"); e(f"s_add_u32 s57, s57, {L_ST2}")
        e("v_lshlrev_b32 v1, 3, v0"); e("v_add_u32 v1, s57, v1"); e("v_mov_b32 v2, s57")
        e("ds_write2_b32 v1, v32, v34 offset0:0 offset1:1"); e("ds_write2_b32 v1, v40, v42 offset0:136 offset1:137")
        e("ds_write2_b32 v2, v36, v38 offset0:128 offset1:129")
        e("v_add_u32 v2, 544, v2"); e("ds_write2_b32 v2, v44, v46 offset0:128 offset1:129")
        e("s_waitcnt lgkmcnt(0)"); e("s_barrier")
        s.stamp(4)
        e("s_cmp_lt_u32 s31, 2"); e("s_cbranch_scc0 L_t2c")
        e("s_mov_b32 s57, s31")
        s.combine(L_ST2, 8)
        e("v_rcp_f32 v19, v19"); e("s_nop 0"); e("v_mul_f32 v16, v16, v19"); e("v_mul_f32 v17, v17, v19")
        e("v_cvt_pk_bf16_f32 v16, v16, v17")
        e("s_lshl_b32 s57, s31, 8"); e(f"s_add_u32 s57, s57, {L_OH}"); e("v_lshlrev_b32 v1, 2, v0"); e("v_add_u32 v1, s57, v1")
        e("ds_write_b32 v1, v16"); e("s_waitcnt lgkmcnt(0)")
        s.lab("L_t2c")
        e("s_barrier")
        e("s_lshl_b32 s57, s31, 5"); e(f"s_add_u32 s57, s57, {L_WO}")
        s.gemv_addr(2, 3, L_OH, 256, "s57", 256, 1)
        s.gemv(12, 2, 3, 256, 4, 32)
        e("s_lshl_b32 s57, s33, 3"); e("s_add_u32 s57, s57, s31"); e("s_lshl_b32 s57, s57, 13")
        e("s_lshl_b32 s58, s32, 8"); e("s_add_u32 s57, s57, s58"); e(f"s_add_u32 s57, s57, {W_Y}")
        e("v_lshlrev_b32 v1, 4, v0")
        s.pub_tile(12, "s57")
        s.stamp(5)
        e("s_branch L_fin")
        s.lab("L_t4")
        e("s_cmp_eq_u32 s31, 4"); e("s_cbranch_scc0 L_t4a")
        e("v_lshlrev_b32 v9, 4, v0")
        e(f"s_mov_b32 s57, {W_X1}"); e(f"s_mov_b32 s58, {W_X1+4096}")
        s.poll([(64+4*j, 9, "s57" if j < 4 else "s58", (j % 4)*1024) for j in range(5)], 10)
        s.stamp(4)
        for j in range(5): s.unpack_gr(32+4*j, 64+4*j)
        e(f"v_lshlrev_b32 v28, 2, v0"); e(f"v_add_u32 v28, {L_H}, v28")
        s.ln_mod(32, 160, 180, 20)
        e("s_waitcnt lgkmcnt(0)")
        s.lab("L_t4a")
        e("s_barrier")
        e("s_and_b32 s57, s31, 1"); e("s_lshl_b32 s57, s57, 5")
        e(f"s_mov_b32 s58, {L_GATE}"); e("s_bitcmp1_b32 s31, 1"); e(f"s_cselect_b32 s58, {L_UP}, s58"); e("s_add_u32 s57, s57, s58")
        e("s_lshr_b32 s58, s31, 2"); e("s_mul_i32 s59, s58, 20480"); e("s_add_u32 s57, s57, s59")
        s.gemv_addr(2, 3, L_H, 1280, "s57", 64, 1)
        e("s_mul_i32 s58, s58, 640"); e("v_add_u32 v2, s58, v2")
        s.gemv(12, 2, 3, 64, 10, 32)
        e("s_lshl_b32 s57, s31, 7"); e(f"s_add_u32 s57, s57, {L_GU}"); e("v_lshlrev_b32 v1, 2, v0"); e("v_add_u32 v1, s57, v1")
        s.lanes16(); e("ds_write_b32 v1, v12"); e("ds_write_b32 v1, v13 offset:64"); s.allx()
        e("s_waitcnt lgkmcnt(0)"); e("s_barrier")
        e("s_cmp_eq_u32 s31, 4"); e("s_cbranch_scc0 L_t4b")
        e("v_bfe_u32 v1, v0, 4, 1"); e("v_lshlrev_b32 v2, 7, v1"); e("v_lshrrev_b32 v1, 5, v0"); e("v_lshl_add_u32 v2, v1, 6, v2")
        e("v_and_b32 v3, 15, v0"); e("v_lshl_add_u32 v2, v3, 2, v2"); e(f"v_add_u32 v2, {L_GU}, v2")
        e("ds_read_b32 v16, v2"); e("ds_read_b32 v17, v2 offset:512"); e("ds_read_b32 v18, v2 offset:256"); e("ds_read_b32 v19, v2 offset:768")
        e("s_waitcnt lgkmcnt(0)")
        e("v_add_f32 v16, v16, v17"); e("v_add_f32 v17, v18, v19"); s.rnd2(16, 17, 18)
        s.silu(16, 18); e("v_mov_b32 v19, 0"); s.rnd2(16, 19, 18)
        e("v_mul_f32 v16, v16, v17"); e("v_cvt_pk_bf16_f32 v16, v16, v16")
        e("v_lshlrev_b32 v2, 6, v1"); e("v_and_b32 v3, 31, v0"); e("v_lshl_add_u32 v2, v3, 1, v2"); e(f"v_add_u32 v2, {L_AC}, v2")
        e("ds_write_b16 v2, v16"); e("s_waitcnt lgkmcnt(0)")
        s.lab("L_t4b")
        e("s_barrier")
        s.stamp(5)
        e("s_mul_i32 s57, s31, 160"); e(f"s_add_u32 s57, s57, {L_DOWN}")
        s.gemv_addr(2, 3, L_AC, 64, "s57", 1280, 1)
        e("ds_read_b128 v[28:31], v2")
        for q in range(5):
            e(f"ds_read_b64_tr_b16 v[{32+4*q}:{33+4*q}], v3 offset:{q*32}")
            e(f"ds_read_b64_tr_b16 v[{34+4*q}:{35+4*q}], v3 offset:{q*32 + 5120}")
        e("s_waitcnt lgkmcnt(0)")
        for q in range(5): e(f"v_mfma_f32_16x16x32_bf16 v[{64+4*q}:{67+4*q}], v[28:31], v[{32+4*q}:{35+4*q}], 0")
        e("s_nop 7")
        e("s_mul_i32 s57, s31, 5"); e("s_mul_i32 s57, s57, 14336"); e("s_lshl_b32 s58, s35, 8"); e("s_add_u32 s57, s57, s58"); e(f"s_add_u32 s57, s57, {W_D}")
        e("v_lshlrev_b32 v1, 4, v0")
        for q in range(5):
            s.pub_tile(64+4*q, "s57")
            if q < 4: e("s_add_u32 s57, s57, 14336")
        s.stamp(6)
        s.lab("L_fin")

    def gen(s):
        e = s.e
        s.L.append(f"; @launch grid=(256,1,1) block=(512,1,1) lds={LDS}")
        s.L.append('.amdgcn_target "amdgcn-amd-amdhsa--gfx950"')
        s.L += [".text", f".globl {KN}", ".p2align 8", f".type {KN},@function", f"{KN}:"]
        e("s_cmp_ge_u32 s2, 256"); e("s_cbranch_scc1 L_end")
        e("s_load_dwordx16 s[4:19], s[0:1], 0"); e("s_load_dwordx8 s[20:27], s[0:1], 64"); e("s_load_dwordx2 s[28:29], s[0:1], 104")
        e("v_lshrrev_b32 v1, 6, v0"); e("v_and_b32 v0, 63, v0"); e("v_readfirstlane_b32 s31, v1")
        e("s_lshr_b32 s32, s2, 3"); e("s_and_b32 s33, s2, 7")
        s.roles()
        s.stamp_fill(0)
        e("s_waitcnt lgkmcnt(0)")
        e("s_load_dword s30, s[28:29], 0")
        s.srd(36, 28, W_SIZE)
        e("s_cmp_ge_u32 s31, 4"); e("s_cbranch_scc1 L_help")
        s.streamer()
        e("s_branch L_tail")
        s.lab("L_help")
        s.helpers()
        s.lab("L_tail")
        s.tail()
        if s.stamps:
            s.stamp(7)
            e(f"s_cmp_eq_u32 s31, {s.sw}"); e("s_cbranch_scc0 L_end")
            s.stamp_write()
        s.lab("L_end"); e("s_endpgm")
        s.L += ['.section .rodata,"a"', ".p2align 6", f".amdhsa_kernel {KN}", "  .amdhsa_next_free_vgpr 256", "  .amdhsa_next_free_sgpr 102",
                "  .amdhsa_accum_offset 256", "  .amdhsa_group_segment_fixed_size 0", "  .amdhsa_kernarg_size 112", "  .amdhsa_user_sgpr_count 2",
                "  .amdhsa_user_sgpr_kernarg_segment_ptr 1", "  .amdhsa_system_sgpr_workgroup_id_x 1", ".end_amdhsa_kernel"]
        return "\n".join(s.L) + "\n"

if __name__ == "__main__":
    kw = {}
    for a in sys.argv[2:]:
        k, v = a.split("="); kw[k] = None if v == "None" else int(v)
    open(sys.argv[1], "w").write(K(**kw).gen())
```

```python
KN = "adaLN_cond__mha_block_cached__swiglu_ffn__decode_kernel"
CEXP = 0x3e0293ee
import struct, math
def f2u(x): return struct.unpack("<I", struct.pack("<f", x))[0]
C_SM = f2u(128 ** -0.5 * math.log2(math.e))
LOG2E = f2u(math.log2(math.e))
NEG = f2u(-1e30)
TAGC = 0x9E3779B9
W_CNT, W_MOD, W_Q, W_X1, W_PART, W_Y, W_D = 0x10000, 0x60000, 0x68000, 0x70000, 0x80000, 0x110000, 0x160000
W_MODP, W_QP = 0x1F0000, 0x208000
W_SIZE = 0x250000
L_WQ = 0; L_MODS = 20480; L_MOD2 = 40960; L_WO = 61440
L_GATE = 20480; L_UP = 61440; L_DOWN = 102400
L_ACT = 143360; L_H = L_ACT + 2560; L_Q = L_H + 2560; L_ST = L_Q + 512; L_OH = L_ST + 4352; L_GU = L_OH + 512; L_AC = L_GU + 1024
L_END = L_AC + 128
L_ST2 = 0
L_ACTA = L_OH
LDS = 159744
assert L_END <= LDS
SPIN = 60000

class G:
    def __init__(s, NB=3, PACE=8, stamps=False, mode="full", sw=4, late=0, **kw):
        s.L = []; s.NB = NB; s.PACE = PACE; s.stamps = stamps; s.mode = mode; s.n = 0; s.sw = sw; s.late = late; s.o = kw
    def e(s, x): s.L.append("  " + x)
    def lab(s, x): s.L.append(x + ":")
    def uniq(s, p): s.n += 1; return f"{p}_{s.n}"
    def srd(s, d, p, size):
        s.e(f"s_mov_b32 s{d}, s{p}"); s.e(f"s_and_b32 s{d+1}, s{p+1}, 0xffff")
        s.e(f"s_mov_b32 s{d+2}, {hex(size)}"); s.e(f"s_mov_b32 s{d+3}, 0x20000")
    def stamp(s, k):
        if s.stamps:
            s.e("s_memrealtime s[90:91]"); s.e("s_waitcnt lgkmcnt(0)"); s.e(f"s_mov_b32 s{80+k}, s90")
    def stamp_fill(s, k):
        if s.stamps:
            s.e("s_memrealtime s[90:91]"); s.e("s_waitcnt lgkmcnt(0)")
            for j in range(k, 8): s.e(f"s_mov_b32 s{80+j}, s90")
    def stamp_write(s):
        if s.stamps and s.o.get("dbg"):
            e = s.e
            e("s_load_dwordx2 s[92:93], s[0:1], 96"); e("s_waitcnt lgkmcnt(0)")
            e("v_mov_b32 v250, 0"); e("s_mov_b64 exec, 1"); e("s_not_b32 s80, s80")
            for j in range(8):
                e(f"v_mov_b32 v252, s{80+j}"); e(f"global_atomic_umax v250, v252, s[92:93] offset:{j*4} sc1"); e("s_nop 1")
            e("s_mov_b64 exec, -1")
        elif s.stamps:
            s.e("s_add_u32 s92, s28, 0x10000000"); s.e("s_addc_u32 s93, s29, 0")
            s.e("s_lshl_b32 s94, s2, 5"); s.e("v_mov_b32 v250, s94")
            s.e("s_mov_b64 exec, 1")
            for j in range(0, 8, 2):
                s.e(f"v_mov_b32 v252, s{80+j}"); s.e(f"v_mov_b32 v253, s{81+j}")
                s.e(f"global_store_dwordx2 v250, v[252:253], s[92:93] offset:{j*4}")
                s.e("s_nop 1")
            s.e("s_mov_b64 exec, -1")
    def wred(s, op, t, src):
        e = s.e
        e("s_nop 1")
        e(f"{op}_dpp v{t}, v{src}, v{src} row_ror:8 row_mask:0xf bank_mask:0xf")
        for r in (4, 2, 1):
            e("s_nop 1"); e(f"{op}_dpp v{t}, v{t}, v{t} row_ror:{r} row_mask:0xf bank_mask:0xf")
        e("s_nop 1"); e(f"{op}_dpp v{t}, v{t}, v{t} row_bcast:15 row_mask:0xa bank_mask:0xf")
        e("s_nop 1"); e(f"{op}_dpp v{t}, v{t}, v{t} row_bcast:31 row_mask:0xc bank_mask:0xf")
    def poll(s, loads, t0, wide=4, pre=None, execs=None):
        e = s.e
        lp = s.uniq("L_poll"); dn = s.uniq("L_polld")
        e(f"s_mov_b32 s56, {SPIN}")
        s.lab(lp)
        for k, (d, vo, so, imm) in enumerate(loads):
            if execs and execs.get(k): e("s_mov_b32 exec_lo, -1"); e("s_mov_b32 exec_hi, 0")
            off = f" offset:{imm}" if imm else ""
            e(f"buffer_load_dwordx{wide} v[{d}:{d+wide-1}], v{vo}, s[36:39], {so} offen{off} sc1")
            if execs and execs.get(k): e("s_mov_b64 exec, -1")
        e("s_waitcnt vmcnt(0)")
        tags = [d+q for (d, vo, so, imm) in loads for q in range(1, wide, 2)]
        if len(tags) <= 2:
            e(f"v_xor_b32 v{t0}, s30, v{tags[0]}")
            if len(tags) == 2: e(f"v_xor_b32 v{t0+1}, s30, v{tags[1]}"); e(f"v_or_b32 v{t0}, v{t0}, v{t0+1}")
        else:
            e(f"v_max3_u32 v{t0}, s30, v{tags[0]}, v{tags[1]}"); e(f"v_min3_u32 v{t0+1}, s30, v{tags[0]}, v{tags[1]}")
            r = tags[2:]
            while r:
                a = r[0]; b = r[1] if len(r) > 1 else r[0]; r = r[2:]
                e(f"v_max3_u32 v{t0}, v{t0}, v{a}, v{b}"); e(f"v_min3_u32 v{t0+1}, v{t0+1}, v{a}, v{b}")
            e(f"v_xor_b32 v{t0}, v{t0}, v{t0+1}")
        e(f"v_cmp_ne_u32 vcc, 0, v{t0}")
        e("s_sub_u32 s56, s56, 1")
        e("s_cmp_eq_u32 s56, 0"); e(f"s_cbranch_scc1 {dn}")
        e("s_and_b64 vcc, exec, vcc")
        e(f"s_cbranch_vccnz {lp}")
        s.lab(dn)
    def dma(s, n, voff, srd, sreg, step, ldsbase, nt=False):
        e = s.e
        nt = True
        for i in range(n):
            e(f"s_mov_b32 m0, {ldsbase + i*1024}")
            if i: e(f"s_add_u32 s{sreg}, s{sreg}, {step}")
            else: e("s_nop 0")
            e(f"buffer_load_dwordx4 v{voff}, s[{srd}:{srd+3}], s{sreg} offen" + (" nt" if nt else "") + " lds")
    def gemv(s, acc, va, vb, RB, steps, r0, batch=10, astep=64, zero=True):
        e = s.e
        k = 0; first = zero
        while k < steps:
            nb = min(batch, steps - k)
            for j in range(nb):
                r = r0 + j*8; st = k + j
                e(f"ds_read_b128 v[{r}:{r+3}], v{va} offset:{st*astep}")
                e(f"ds_read_b64_tr_b16 v[{r+4}:{r+5}], v{vb} offset:{st*32*RB}")
                e(f"ds_read_b64_tr_b16 v[{r+6}:{r+7}], v{vb} offset:{st*32*RB + 4*RB}")
            e("s_waitcnt lgkmcnt(0)")
            for j in range(nb):
                r = r0 + j*8
                c = "0" if first else f"v[{acc}:{acc+3}]"; first = False
                e(f"v_mfma_f32_16x16x32_bf16 v[{acc}:{acc+3}], v[{r}:{r+3}], v[{r+4}:{r+7}], {c}")
            k += nb
        e("s_nop 7")
    def gemv4(s, acc, va, vb, RB, steps, r0):
        e = s.e
        for st in range(steps):
            r = r0 + st*20
            e(f"ds_read_b128 v[{r}:{r+3}], v{va} offset:{st*64}")
            for q in range(4):
                e(f"ds_read_b64_tr_b16 v[{r+4+4*q}:{r+5+4*q}], v{vb} offset:{st*32*RB + q*32}")
                e(f"ds_read_b64_tr_b16 v[{r+6+4*q}:{r+7+4*q}], v{vb} offset:{st*32*RB + 4*RB + q*32}")
        for st in range(steps):
            r = r0 + st*20
            e(f"s_waitcnt lgkmcnt({min(15, (steps-1-st)*9)})")
            for q in range(4):
                c = "0" if st == 0 else f"v[{acc+4*q}:{acc+4*q+3}]"
                e(f"v_mfma_f32_16x16x32_bf16 v[{acc+4*q}:{acc+4*q+3}], v[{r}:{r+3}], v[{r+4+4*q}:{r+7+4*q}], {c}")
        e("s_nop 7")
    def gemv_addr(s, va, vb, abase, arow, bbase, RB, t):
        e = s.e
        e(f"v_and_b32 v{t}, 1, v0"); e(f"v_mul_u32_u24 v{va}, {arow}, v{t}")
        e(f"v_lshrrev_b32 v{t}, 4, v0"); e(f"v_lshl_add_u32 v{va}, v{t}, 4, v{va}")
        e(f"v_add_u32 v{va}, {abase}, v{va}")
        e(f"v_lshlrev_b32 v{vb}, 3, v{t}")
        e(f"v_bfe_u32 v{t}, v0, 2, 2"); e(f"v_add_u32 v{vb}, v{vb}, v{t}")
        e(f"v_mul_u32_u24 v{vb}, {RB}, v{vb}")
        e(f"v_and_b32 v{t}, 3, v0"); e(f"v_lshl_add_u32 v{vb}, v{t}, 3, v{vb}")
        if isinstance(bbase, int): e(f"v_add_u32 v{vb}, {bbase}, v{vb}")
        else: e(f"v_add_u32 v{vb}, {bbase}, v{vb}")
    def unpack(s, lo, hi, src):
        s.e(f"v_and_b32 v{hi}, 0xffff0000, v{src}"); s.e(f"v_lshlrev_b32 v{lo}, 16, v{src}")
    def rnd2(s, a, b, t):
        s.e(f"v_cvt_pk_bf16_f32 v{t}, v{a}, v{b}"); s.unpack(a, b, t)

    def save_state(s, bexpr):
        e = s.e
        e("s_lshl_b32 s57, s31, 1"); e(f"s_add_u32 s57, s57, {bexpr}"); e("s_mul_i32 s57, s57, 544"); e(f"s_add_u32 s57, s57, {L_ST}")
        s.wred("v_add_f32", 14, 13)
        e("v_lshrrev_b32 v15, 4, v0"); e("v_lshlrev_b32 v15, 7, v15"); e("v_and_b32 v1, 15, v0"); e("v_lshl_add_u32 v15, v1, 2, v15")
        e("v_add_u32 v15, s57, v15")
        e("s_mov_b32 exec_lo, 0x00ff00ff"); e("s_mov_b32 exec_hi, 0x00ff00ff")
        for r in range(4): e(f"ds_write_b32 v15, v{16+r} offset:{r*32}")
        e("s_mov_b32 exec_lo, 0"); e("s_mov_b32 exec_hi, 0x80000000")
        e("v_mov_b32 v13, v14"); e("v_mov_b32 v15, s57")
        e("ds_write_b64 v15, v[12:13] offset:512")
        e("s_mov_b64 exec, -1")
    def init_state(s):
        e = s.e
        e(f"v_mov_b32 v12, {hex(NEG)}"); e("v_mov_b32 v13, 0")
        for r in range(4): e(f"v_mov_b32 v{16+r}, 0")
    def load_q(s, b):
        e = s.e
        e("v_bfe_u32 v14, v0, 2, 2"); e("v_lshrrev_b32 v15, 4, v0"); e("v_lshl_add_u32 v14, v15, 2, v14"); e("v_lshlrev_b32 v14, 4, v14")
        e(f"v_add_u32 v14, {L_Q + b*256}, v14")
        e(f"ds_read_b128 v[28:31], v14")
        e("v_and_b32 v15, 3, v0")
        e("s_waitcnt lgkmcnt(0)")
        for t in range(4):
            e(f"v_cmp_eq_u32 vcc, {t}, v15"); e("s_nop 1")
            for r in range(4): e(f"v_cndmask_b32 v{40+4*t+r}, 0, v{28+r}, vcc")
    def tile_loads(s, j, treg, dummy=False):
        e = s.e
        e(f"s_lshr_b32 s52, s{treg}, 9"); e("s_lshl_b32 s52, s52, 5"); e("s_add_u32 s52, s52, s32"); e("s_lshl_b32 s52, s52, 22")
        e(f"s_and_b32 s53, s{treg}, 511"); e("s_lshl_b32 s53, s53, 13"); e("s_add_u32 s52, s52, s53"); e("s_add_u32 s53, s52, 4096")
        base = 64 + 64*j
        for u in range(8):
            r = base + 4*u
            e(f"buffer_load_dwordx4 v[{r}:{r+3}], v2, s[40:43], s{52 + u//4} offen offset:{(u%4)*1024} nt")
        for u in range(8):
            r = base + 32 + 4*u
            e(f"buffer_load_dwordx4 v[{r}:{r+3}], v3, s[44:47], s{52 + u//4} offen offset:{(u%4)*1024} nt")
        if dummy:
            e("buffer_load_dword v8, v3, s[40:43], s52 offen nt")
        else:
            e(f"v_mov_b32 v{5+j}, 1"); e("s_mov_b64 exec, 1")
            e(f"buffer_atomic_add v{5+j}, v4, s[36:39], 0 offen sc0")
            e("s_mov_b64 exec, -1")
    def consume(s, j):
        e = s.e
        base = 64 + 64*j
        if s.o.get("nocomp"): return
        for t in range(4):
            for a in range(2):
                u = 4*a + t; r = base + 4*u; acc = 20 + 4*a
                c = "0" if t == 0 else f"v[{acc}:{acc+3}]"
                e(f"v_mfma_f32_16x16x32_bf16 v[{acc}:{acc+3}], v[{r}:{r+3}], v[{40+4*t}:{43+4*t}], {c}")
        e("s_nop 7")
        D = "row_mask:0xf"
        e(f"v_add_f32_dpp v9, v21, v20 row_ror:12 {D} bank_mask:0x1")
        e(f"v_add_f32_dpp v9, v24, v25 row_ror:4 {D} bank_mask:0x2")
        e(f"v_add_f32_dpp v9, v22, v9 row_ror:8 {D} bank_mask:0x1")
        e(f"v_add_f32_dpp v9, v26, v9 row_ror:12 {D} bank_mask:0x2")
        e(f"v_add_f32_dpp v9, v23, v9 row_ror:4 {D} bank_mask:0x1")
        e(f"v_add_f32_dpp v9, v27, v9 row_ror:8 {D} bank_mask:0x2")
        s.wred("v_max_f32", 14, 9)
        e("s_nop 0"); e("v_readlane_b32 s54, v14, 63"); e("s_nop 1")
        e("v_max_f32 v14, s54, v12")
        e("v_sub_f32 v15, v12, v14"); e("v_sub_f32 v10, v9, v14")
        e("v_mul_f32 v15, s55, v15"); e("v_mul_f32 v10, s55, v10")
        e("v_exp_f32 v15, v15"); e("v_exp_f32 v10, v10")
        e("v_mov_b32 v12, v14")
        e("v_fma_f32 v13, v13, v15, v10")
        for r in range(4): e(f"v_mul_f32 v{16+r}, v{16+r}, v15")
        e("v_cvt_pk_bf16_f32 v10, v10, v10")
        e("s_nop 1")
        def ands(u):
            b = 28 + 4*(u & 1)
            for r in range(4): e(f"v_and_b32_dpp v{b+r}, v10, v{36+r} row_newbcast:{u} row_mask:0xf bank_mask:0xf")
        ands(0)
        for u in range(8):
            if u < 7: ands(u+1)
            else: e("s_nop 1")
            r = base + 32 + 4*u; b = 28 + 4*(u & 1)
            e(f"v_mfma_f32_16x16x32_bf16 v[16:19], v[{r}:{r+3}], v[{b}:{b+3}], v[16:19]")
    def streamer(s):
        e = s.e; NB = s.NB
        s.srd(40, 6, 0x10000000); s.srd(44, 8, 0x10000000)
        e("v_bfe_u32 v1, v0, 2, 2"); e("v_lshlrev_b32 v2, 8, v1")
        e("v_and_b32 v1, 3, v0"); e("v_lshl_add_u32 v2, v1, 4, v2")
        e("v_lshrrev_b32 v1, 4, v0"); e("v_lshl_add_u32 v2, v1, 6, v2")
        e("v_lshlrev_b32 v3, 4, v0")
        if s.o.get("klin"): e("v_mov_b32 v2, v3")
        e("s_lshl_b32 s57, s33, 2"); e("s_add_u32 s57, s57, s31")
        def prologue(j0, j1):
            for j in range(j0, j1): s.tile_loads(j, 60+j, dummy=True)
        for j in range(NB): e(f"s_add_u32 s{60+j}, s57, {32*j}")
        p0 = s.o.get("p0", 1); p1 = s.o.get("p1", 1)
        e("s_barrier")
        prologue(0, p0)
        e(f"s_lshl_b32 s58, s32, 13"); e(f"s_add_u32 s58, s58, {W_CNT}"); e("v_mov_b32 v4, s58")
        for j in range(NB):
            e(f"s_add_u32 s58, s57, {(32*(NB+j) - 2*NB*32) & 0xffffffff}"); e(f"v_mov_b32 v{5+j}, s58")
        e("v_and_b32 v1, 15, v0")
        for r in range(4): e(f"v_mov_b32 v{36+r}, 0")
        e("v_mov_b32 v14, 0xffff"); e("v_mov_b32 v15, 0xffff0000")
        for r in range(4):
            e(f"v_cmp_eq_u32 vcc, {2*r}, v1"); e("s_nop 1"); e(f"v_cndmask_b32 v{36+r}, v{36+r}, v14, vcc")
            e(f"v_cmp_eq_u32 vcc, {2*r+1}, v1"); e("s_nop 1"); e(f"v_cndmask_b32 v{36+r}, v{36+r}, v15, vcc")
        e(f"v_mov_b32 v9, {hex(NEG)}")
        s.init_state()
        e(f"s_mov_b32 s55, {hex(C_SM)}")
        e("s_mov_b32 s59, 0")
        e("s_mov_b32 s64, 0")
        e("s_waitcnt lgkmcnt(0)"); e(f"s_add_u32 s30, s30, {hex(TAGC)}")
        e("s_barrier")
        prologue(p0, p0+p1)
        e("s_barrier")
        prologue(p0+p1, NB)
        s.load_q(0)
        s.lab("L_stream")
        for j in range(NB):
            s.lab(f"L_pos{j}")
            e(f"s_waitcnt vmcnt({(NB-1)*17})")
            e("s_cmp_eq_u32 s64, 0"); e(f"s_cbranch_scc1 L_nd{j}")
            e("s_waitcnt vmcnt(0)")
            s.lab(f"L_nd{j}")
            e(f"s_lshr_b32 s57, s{60+j}, 9"); e("s_cmp_lg_u32 s57, s59"); e(f"s_cbranch_scc1 L_sw{j}")
            s.lab(f"L_swr{j}")
            e(f"v_readfirstlane_b32 s58, v{5+j}")
            s.consume(j)
            e("s_cmp_eq_u32 s64, 0"); e(f"s_cbranch_scc0 L_dr{j}")
            e(f"s_add_u32 s{60+j}, s58, {2*NB*32}")
            e(f"s_cmp_ge_u32 s{60+j}, 1024"); e(f"s_cbranch_scc1 L_stop{j}")
            s.tile_loads(j, 60+j)
            if j == NB-1: e("s_branch L_pos0")
        for j in range(NB):
            nxt = f"L_pos{(j+1) % NB}"
            s.lab(f"L_stop{j}")
            e(f"s_mov_b32 s64, {NB-1}"); e(f"s_branch {nxt}")
            s.lab(f"L_dr{j}")
            e("s_sub_u32 s64, s64, 1"); e("s_cmp_eq_u32 s64, 0"); e("s_cbranch_scc1 L_sdone")
            e(f"s_branch {nxt}")
            s.lab(f"L_sw{j}")
            s.save_state(0)
            s.init_state()
            s.load_q(1)
            e("s_mov_b32 s59, 1")
            e(f"s_branch L_swr{j}")
        s.lab("L_sdone")
        e("s_nop 7")
        s.save_state("s59")
        e("s_cmp_eq_u32 s59, 1"); e("s_cbranch_scc1 L_ssaved")
        s.init_state(); e("s_nop 1")
        s.save_state(1)
        s.lab("L_ssaved")
        e("s_waitcnt lgkmcnt(0)")
        e("s_barrier")
```

```python
KN = "adaLN_cond__mha_block_cached__swiglu_ffn__decode_kernel"
CEXP = 0x3e0293ee
import struct, math
def f2u(x): return struct.unpack("<I", struct.pack("<f", x))[0]
C_SM = f2u(128 ** -0.5 * math.log2(math.e))
LOG2E = f2u(math.log2(math.e))
NEG = f2u(-1e30)
TAGC = 0x9E3779B9
W_CNT, W_MOD, W_Q, W_X1, W_PART, W_Y, W_D = 0x10000, 0x60000, 0x68000, 0x70000, 0x80000, 0x110000, 0x160000
W_MODP, W_QP = 0x1F0000, 0x208000
W_SIZE = 0x250000
L_WQ = 0; L_MODS = 20480; L_MOD2 = 40960; L_WO = 61440
L_GATE = 20480; L_UP = 61440; L_DOWN = 102400
L_ACT = 143360; L_H = L_ACT + 2560; L_Q = L_H + 2560; L_ST = L_Q + 512; L_OH = L_ST + 4352; L_GU = L_OH + 512; L_AC = L_GU + 1024
L_END = L_AC + 128
L_ST2 = 0
L_ACTA = L_OH
LDS = 159744
assert L_END <= LDS
SPIN = 60000

class G:
    def __init__(s, NB=3, PACE=8, stamps=False, mode="full", sw=4, late=0, **kw):
        s.L = []; s.NB = NB; s.PACE = PACE; s.stamps = stamps; s.mode = mode; s.n = 0; s.sw = sw; s.late = late; s.o = kw
    def e(s, x): s.L.append("  " + x)
    def lab(s, x): s.L.append(x + ":")
    def uniq(s, p): s.n += 1; return f"{p}_{s.n}"
    def srd(s, d, p, size):
        s.e(f"s_mov_b32 s{d}, s{p}"); s.e(f"s_and_b32 s{d+1}, s{p+1}, 0xffff")
        s.e(f"s_mov_b32 s{d+2}, {hex(size)}"); s.e(f"s_mov_b32 s{d+3}, 0x20000")
    def stamp(s, k):
        if s.stamps:
            s.e("s_memrealtime s[90:91]"); s.e("s_waitcnt lgkmcnt(0)"); s.e(f"s_mov_b32 s{80+k}, s90")
    def stamp_fill(s, k):
        if s.stamps:
            s.e("s_memrealtime s[90:91]"); s.e("s_waitcnt lgkmcnt(0)")
            for j in range(k, 8): s.e(f"s_mov_b32 s{80+j}, s90")
    def stamp_write(s):
        if s.stamps and s.o.get("dbg"):
            e = s.e
            e("s_cmp_eq_u32 s2, 7"); e("s_cbranch_scc1 L_dbgw0"); e("s_cmp_eq_u32 s2, 5"); e("s_cbranch_scc0 L_dbgx")
            e("s_load_dwordx2 s[92:93], s[0:1], 96"); e("s_waitcnt lgkmcnt(0)"); e("s_add_u32 s92, s92, 32"); e("s_addc_u32 s93, s93, 0"); e("s_branch L_dbgw1")
            s.lab("L_dbgw0")
            e("s_load_dwordx2 s[92:93], s[0:1], 96"); e("s_waitcnt lgkmcnt(0)")
            s.lab("L_dbgw1")
            e("v_mov_b32 v250, 0"); e("s_mov_b64 exec, 1")
            for j in range(0, 8, 2):
                e(f"v_mov_b32 v252, s{80+j}"); e(f"v_mov_b32 v253, s{81+j}")
                e(f"global_store_dwordx2 v250, v[252:253], s[92:93] offset:{j*4}"); e("s_nop 1")
            e("s_mov_b64 exec, -1")
            s.lab("L_dbgx")
        elif s.stamps:
            s.e("s_add_u32 s92, s28, 0x10000000"); s.e("s_addc_u32 s93, s29, 0")
            s.e("s_lshl_b32 s94, s2, 5"); s.e("v_mov_b32 v250, s94")
            s.e("s_mov_b64 exec, 1")
            for j in range(0, 8, 2):
                s.e(f"v_mov_b32 v252, s{80+j}"); s.e(f"v_mov_b32 v253, s{81+j}")
                s.e(f"global_store_dwordx2 v250, v[252:253], s[92:93] offset:{j*4}")
                s.e("s_nop 1")
            s.e("s_mov_b64 exec, -1")
    def wred(s, op, t, src):
        e = s.e
        e("s_nop 1")
        e(f"{op}_dpp v{t}, v{src}, v{src} row_ror:8 row_mask:0xf bank_mask:0xf")
        for r in (4, 2, 1):
            e("s_nop 1"); e(f"{op}_dpp v{t}, v{t}, v{t} row_ror:{r} row_mask:0xf bank_mask:0xf")
        e("s_nop 1"); e(f"{op}_dpp v{t}, v{t}, v{t} row_bcast:15 row_mask:0xa bank_mask:0xf")
        e("s_nop 1"); e(f"{op}_dpp v{t}, v{t}, v{t} row_bcast:31 row_mask:0xc bank_mask:0xf")
    def poll(s, loads, t0, wide=4, pre=None, execs=None):
        e = s.e
        lp = s.uniq("L_poll"); dn = s.uniq("L_polld")
        e(f"s_mov_b32 s56, {SPIN}")
        s.lab(lp)
        for k, (d, vo, so, imm) in enumerate(loads):
            if execs and execs.get(k): e("s_mov_b32 exec_lo, -1"); e("s_mov_b32 exec_hi, 0")
            off = f" offset:{imm}" if imm else ""
            e(f"buffer_load_dwordx{wide} v[{d}:{d+wide-1}], v{vo}, s[36:39], {so} offen{off} sc1")
            if execs and execs.get(k): e("s_mov_b64 exec, -1")
        e("s_waitcnt vmcnt(0)")
        tags = [d+q for (d, vo, so, imm) in loads for q in range(1, wide, 2)]
        if len(tags) <= 2:
            e(f"v_xor_b32 v{t0}, s30, v{tags[0]}")
            if len(tags) == 2: e(f"v_xor_b32 v{t0+1}, s30, v{tags[1]}"); e(f"v_or_b32 v{t0}, v{t0}, v{t0+1}")
        else:
            e(f"v_max3_u32 v{t0}, s30, v{tags[0]}, v{tags[1]}"); e(f"v_min3_u32 v{t0+1}, s30, v{tags[0]}, v{tags[1]}")
            r = tags[2:]
            while r:
                a = r[0]; b = r[1] if len(r) > 1 else r[0]; r = r[2:]
                e(f"v_max3_u32 v{t0}, v{t0}, v{a}, v{b}"); e(f"v_min3_u32 v{t0+1}, v{t0+1}, v{a}, v{b}")
            e(f"v_xor_b32 v{t0}, v{t0}, v{t0+1}")
        e(f"v_cmp_ne_u32 vcc, 0, v{t0}")
        e("s_sub_u32 s56, s56, 1")
        e("s_cmp_eq_u32 s56, 0"); e(f"s_cbranch_scc1 {dn}")
        e("s_and_b64 vcc, exec, vcc")
        e(f"s_cbranch_vccnz {lp}")
        s.lab(dn)
    def dma(s, n, voff, srd, sreg, step, ldsbase, nt=False):
        e = s.e
        nt = True
        for i in range(n):
            e(f"s_mov_b32 m0, {ldsbase + i*1024}")
            if i: e(f"s_add_u32 s{sreg}, s{sreg}, {step}")
            else: e("s_nop 0")
            e(f"buffer_load_dwordx4 v{voff}, s[{srd}:{srd+3}], s{sreg} offen" + (" nt" if nt else "") + " lds")
    def gemv(s, acc, va, vb, RB, steps, r0, batch=10, astep=64, zero=True):
        e = s.e
        k = 0; first = zero
        while k < steps:
            nb = min(batch, steps - k)
            for j in range(nb):
                r = r0 + j*8; st = k + j
                e(f"ds_read_b128 v[{r}:{r+3}], v{va} offset:{st*astep}")
                e(f"ds_read_b64_tr_b16 v[{r+4}:{r+5}], v{vb} offset:{st*32*RB}")
                e(f"ds_read_b64_tr_b16 v[{r+6}:{r+7}], v{vb} offset:{st*32*RB + 4*RB}")
            e("s_waitcnt lgkmcnt(0)")
            for j in range(nb):
                r = r0 + j*8
                c = "0" if first else f"v[{acc}:{acc+3}]"; first = False
                e(f"v_mfma_f32_16x16x32_bf16 v[{acc}:{acc+3}], v[{r}:{r+3}], v[{r+4}:{r+7}], {c}")
            k += nb
        e("s_nop 7")
    def gemv4(s, acc, va, vb, RB, steps, r0):
        e = s.e
        for st in range(steps):
            r = r0 + st*20
            e(f"ds_read_b128 v[{r}:{r+3}], v{va} offset:{st*64}")
            for q in range(4):
                e(f"ds_read_b64_tr_b16 v[{r+4+4*q}:{r+5+4*q}], v{vb} offset:{st*32*RB + q*32}")
                e(f"ds_read_b64_tr_b16 v[{r+6+4*q}:{r+7+4*q}], v{vb} offset:{st*32*RB + 4*RB + q*32}")
        for st in range(steps):
            r = r0 + st*20
            e(f"s_waitcnt lgkmcnt({min(15, (steps-1-st)*9)})")
            for q in range(4):
                c = "0" if st == 0 else f"v[{acc+4*q}:{acc+4*q+3}]"
                e(f"v_mfma_f32_16x16x32_bf16 v[{acc+4*q}:{acc+4*q+3}], v[{r}:{r+3}], v[{r+4+4*q}:{r+7+4*q}], {c}")
        e("s_nop 7")
    def gemv_addr(s, va, vb, abase, arow, bbase, RB, t):
        e = s.e
        e(f"v_and_b32 v{t}, 1, v0"); e(f"v_mul_u32_u24 v{va}, {arow}, v{t}")
        e(f"v_lshrrev_b32 v{t}, 4, v0"); e(f"v_lshl_add_u32 v{va}, v{t}, 4, v{va}")
        e(f"v_add_u32 v{va}, {abase}, v{va}")
        e(f"v_lshlrev_b32 v{vb}, 3, v{t}")
        e(f"v_bfe_u32 v{t}, v0, 2, 2"); e(f"v_add_u32 v{vb}, v{vb}, v{t}")
        e(f"v_mul_u32_u24 v{vb}, {RB}, v{vb}")
        e(f"v_and_b32 v{t}, 3, v0"); e(f"v_lshl_add_u32 v{vb}, v{t}, 3, v{vb}")
        if isinstance(bbase, int): e(f"v_add_u32 v{vb}, {bbase}, v{vb}")
        else: e(f"v_add_u32 v{vb}, {bbase}, v{vb}")
    def unpack(s, lo, hi, src):
        s.e(f"v_and_b32 v{hi}, 0xffff0000, v{src}"); s.e(f"v_lshlrev_b32 v{lo}, 16, v{src}")
    def rnd2(s, a, b, t):
        s.e(f"v_cvt_pk_bf16_f32 v{t}, v{a}, v{b}"); s.unpack(a, b, t)

    def save_state(s, bexpr):
        e = s.e
        e("s_lshl_b32 s57, s31, 1"); e(f"s_add_u32 s57, s57, {bexpr}"); e("s_mul_i32 s57, s57, 544"); e(f"s_add_u32 s57, s57, {L_ST}")
        s.wred("v_add_f32", 14, 13)
        e("v_lshrrev_b32 v15, 4, v0"); e("v_lshlrev_b32 v15, 7, v15"); e("v_and_b32 v1, 15, v0"); e("v_lshl_add_u32 v15, v1, 2, v15")
        e("v_add_u32 v15, s57, v15")
        e("s_mov_b32 exec_lo, 0x00ff00ff"); e("s_mov_b32 exec_hi, 0x00ff00ff")
        for r in range(4): e(f"ds_write_b32 v15, v{16+r} offset:{r*32}")
        e("s_mov_b32 exec_lo, 0"); e("s_mov_b32 exec_hi, 0x80000000")
        e("v_mov_b32 v13, v14"); e("v_mov_b32 v15, s57")
        e("ds_write_b64 v15, v[12:13] offset:512")
        e("s_mov_b64 exec, -1")
    def init_state(s):
        e = s.e
        e(f"v_mov_b32 v12, {hex(NEG)}"); e("v_mov_b32 v13, 0")
        for r in range(4): e(f"v_mov_b32 v{16+r}, 0")
    def load_q(s, b):
        e = s.e
        e("v_bfe_u32 v14, v0, 2, 2"); e("v_lshrrev_b32 v15, 4, v0"); e("v_lshl_add_u32 v14, v15, 2, v14"); e("v_lshlrev_b32 v14, 4, v14")
        e(f"v_add_u32 v14, {L_Q + b*256}, v14")
        e(f"ds_read_b128 v[28:31], v14")
        e("v_and_b32 v15, 3, v0")
        e("s_waitcnt lgkmcnt(0)")
        for t in range(4):
            e(f"v_cmp_eq_u32 vcc, {t}, v15"); e("s_nop 1")
            for r in range(4): e(f"v_cndmask_b32 v{40+4*t+r}, 0, v{28+r}, vcc")
    def tile_loads(s, j, treg, dummy=False):
        e = s.e
        e(f"s_lshr_b32 s52, s{treg}, 9"); e("s_lshl_b32 s52, s52, 5"); e("s_add_u32 s52, s52, s32"); e("s_lshl_b32 s52, s52, 22")
        e(f"s_and_b32 s53, s{treg}, 511"); e("s_lshl_b32 s53, s53, 13"); e("s_add_u32 s52, s52, s53"); e("s_add_u32 s53, s52, 4096")
        base = 64 + 64*j
        for u in range(8):
            r = base + 4*u
            e(f"buffer_load_dwordx4 v[{r}:{r+3}], v2, s[40:43], s{52 + u//4} offen offset:{(u%4)*1024} nt")
        for u in range(8):
            r = base + 32 + 4*u
            e(f"buffer_load_dwordx4 v[{r}:{r+3}], v3, s[44:47], s{52 + u//4} offen offset:{(u%4)*1024} nt")
        if dummy:
            e("buffer_load_dword v8, v3, s[40:43], s52 offen nt")
        else:
            e(f"v_mov_b32 v{5+j}, 1"); e("s_mov_b64 exec, 1")
            e(f"buffer_atomic_add v{5+j}, v4, s[36:39], 0 offen sc0")
            e("s_mov_b64 exec, -1")
    def consume(s, j):
        e = s.e
        base = 64 + 64*j
        if s.o.get("nocomp"): return
        for t in range(4):
            for a in range(2):
                u = 4*a + t; r = base + 4*u; acc = 20 + 4*a
                c = "0" if t == 0 else f"v[{acc}:{acc+3}]"
                e(f"v_mfma_f32_16x16x32_bf16 v[{acc}:{acc+3}], v[{r}:{r+3}], v[{40+4*t}:{43+4*t}], {c}")
        e("s_nop 7")
        D = "row_mask:0xf"
        e(f"v_add_f32_dpp v9, v21, v20 row_ror:12 {D} bank_mask:0x1")
        e(f"v_add_f32_dpp v9, v24, v25 row_ror:4 {D} bank_mask:0x2")
        e(f"v_add_f32_dpp v9, v22, v9 row_ror:8 {D} bank_mask:0x1")
        e(f"v_add_f32_dpp v9, v26, v9 row_ror:12 {D} bank_mask:0x2")
        e(f"v_add_f32_dpp v9, v23, v9 row_ror:4 {D} bank_mask:0x1")
        e(f"v_add_f32_dpp v9, v27, v9 row_ror:8 {D} bank_mask:0x2")
        s.wred("v_max_f32", 14, 9)
        e("s_nop 0"); e("v_readlane_b32 s54, v14, 63"); e("s_nop 1")
        e("v_max_f32 v14, s54, v12")
        e("v_sub_f32 v15, v12, v14"); e("v_sub_f32 v10, v9, v14")
        e("v_mul_f32 v15, s55, v15"); e("v_mul_f32 v10, s55, v10")
        e("v_exp_f32 v15, v15"); e("v_exp_f32 v10, v10")
        e("v_mov_b32 v12, v14")
        e("v_fma_f32 v13, v13, v15, v10")
        for r in range(4): e(f"v_mul_f32 v{16+r}, v{16+r}, v15")
        e("v_cvt_pk_bf16_f32 v10, v10, v10")
        e("s_nop 1")
        def ands(u):
            b = 28 + 4*(u & 1)
            for r in range(4): e(f"v_and_b32_dpp v{b+r}, v10, v{36+r} row_newbcast:{u} row_mask:0xf bank_mask:0xf")
        ands(0)
        for u in range(8):
            if u < 7: ands(u+1)
            else: e("s_nop 1")
            r = base + 32 + 4*u; b = 28 + 4*(u & 1)
            e(f"v_mfma_f32_16x16x32_bf16 v[16:19], v[{r}:{r+3}], v[{b}:{b+3}], v[16:19]")
    def streamer(s):
        e = s.e; NB = s.NB
        s.srd(40, 6, 0x10000000); s.srd(44, 8, 0x10000000)
        e("v_bfe_u32 v1, v0, 2, 2"); e("v_lshlrev_b32 v2, 8, v1")
        e("v_and_b32 v1, 3, v0"); e("v_lshl_add_u32 v2, v1, 4, v2")
        e("v_lshrrev_b32 v1, 4, v0"); e("v_lshl_add_u32 v2, v1, 6, v2")
        e("v_lshlrev_b32 v3, 4, v0")
        if s.o.get("klin"): e("v_mov_b32 v2, v3")
        e("s_lshl_b32 s57, s33, 2"); e("s_add_u32 s57, s57, s31")
        def prologue(j0, j1):
            for j in range(j0, j1): s.tile_loads(j, 60+j, dummy=True)
        for j in range(NB): e(f"s_add_u32 s{60+j}, s57, {32*j}")
        p0 = s.o.get("p0", 1); p1 = s.o.get("p1", 1)
        e("s_barrier")
        prologue(0, p0)
        e(f"s_lshl_b32 s58, s32, 13"); e(f"s_add_u32 s58, s58, {W_CNT}"); e("v_mov_b32 v4, s58")
        for j in range(NB):
            e(f"s_add_u32 s58, s57, {(32*(NB+j) - 2*NB*32) & 0xffffffff}"); e(f"v_mov_b32 v{5+j}, s58")
        e("v_and_b32 v1, 15, v0")
        for r in range(4): e(f"v_mov_b32 v{36+r}, 0")
        e("v_mov_b32 v14, 0xffff"); e("v_mov_b32 v15, 0xffff0000")
        for r in range(4):
            e(f"v_cmp_eq_u32 vcc, {2*r}, v1"); e("s_nop 1"); e(f"v_cndmask_b32 v{36+r}, v{36+r}, v14, vcc")
            e(f"v_cmp_eq_u32 vcc, {2*r+1}, v1"); e("s_nop 1"); e(f"v_cndmask_b32 v{36+r}, v{36+r}, v15, vcc")
        e(f"v_mov_b32 v9, {hex(NEG)}")
        s.init_state()
        e(f"s_mov_b32 s55, {hex(C_SM)}")
        e("s_mov_b32 s59, 0")
        e("s_mov_b32 s64, 0")
        e("s_waitcnt lgkmcnt(0)"); e(f"s_add_u32 s30, s30, {hex(TAGC)}")
        e("s_barrier")
        prologue(p0, p0+p1)
        e("s_barrier")
        prologue(p0+p1, NB)
        s.load_q(0)
        s.lab("L_stream")
        for j in range(NB):
            s.lab(f"L_pos{j}")
            e(f"s_waitcnt vmcnt({(NB-1)*17})")
            e("s_cmp_eq_u32 s64, 0"); e(f"s_cbranch_scc1 L_nd{j}")
            e("s_waitcnt vmcnt(0)")
            s.lab(f"L_nd{j}")
            e(f"s_lshr_b32 s57, s{60+j}, 9"); e("s_cmp_lg_u32 s57, s59"); e(f"s_cbranch_scc1 L_sw{j}")
            s.lab(f"L_swr{j}")
            e(f"v_readfirstlane_b32 s58, v{5+j}")
            s.consume(j)
            e("s_cmp_eq_u32 s64, 0"); e(f"s_cbranch_scc0 L_dr{j}")
            e(f"s_add_u32 s{60+j}, s58, {2*NB*32}")
            e(f"s_cmp_ge_u32 s{60+j}, 1024"); e(f"s_cbranch_scc1 L_stop{j}")
            s.tile_loads(j, 60+j)
            if j == NB-1: e("s_branch L_pos0")
        for j in range(NB):
            nxt = f"L_pos{(j+1) % NB}"
            s.lab(f"L_stop{j}")
            e(f"s_mov_b32 s64, {NB-1}"); e(f"s_branch {nxt}")
            s.lab(f"L_dr{j}")
            e("s_sub_u32 s64, s64, 1"); e("s_cmp_eq_u32 s64, 0"); e("s_cbranch_scc1 L_sdone")
            e(f"s_branch {nxt}")
            s.lab(f"L_sw{j}")
            s.save_state(0)
            s.init_state()
            s.load_q(1)
            e("s_mov_b32 s59, 1")
            e(f"s_branch L_swr{j}")
        s.lab("L_sdone")
        e("s_nop 7")
        s.save_state("s59")
        e("s_cmp_eq_u32 s59, 1"); e("s_cbranch_scc1 L_ssaved")
        s.init_state(); e("s_nop 1")
        s.save_state(1)
        s.lab("L_ssaved")
        e("s_waitcnt lgkmcnt(0)")
        e("s_barrier")
```

```python
KN = "adaLN_cond__mha_block_cached__swiglu_ffn__decode_kernel"
CEXP = 0x3e0293ee
import struct, math
def f2u(x): return struct.unpack("<I", struct.pack("<f", x))[0]
C_SM = f2u(128 ** -0.5 * math.log2(math.e))
LOG2E = f2u(math.log2(math.e))
NEG = f2u(-1e30)
TAGC = 0x9E3779B9
W_CNT, W_MOD, W_Q, W_X1, W_PART, W_Y, W_D = 0x10000, 0x60000, 0x68000, 0x70000, 0x80000, 0x110000, 0x160000
W_MODP, W_QP = 0x1F0000, 0x208000
W_SIZE = 0x250000
W_PA, W_PM = 0x80000, 0xC0000
L_WQ = 0; L_MODS = 40960; L_MOD2 = 40960; L_WO = 61440
L_GATE = 20480; L_UP = 61440; L_DOWN = 102400
L_ACT = 143360; L_H = L_ACT + 2560; L_Q = L_H + 2560; L_ST = L_Q + 512; L_OH = L_ST + 4352; L_GU = L_OH + 512; L_AC = L_GU + 1024
L_END = L_AC + 128
L_ST2 = 0
L_A2 = 0; L_W2 = 4608; HROW = 1344
L_ACTA = L_OH
LDS = 159744
assert L_END <= LDS
SPIN = 60000

class G:
    def __init__(s, NB=3, PACE=8, stamps=False, mode="full", sw=4, late=0, **kw):
        s.L = []; s.NB = NB; s.PACE = PACE; s.stamps = stamps; s.mode = mode; s.n = 0; s.sw = sw; s.late = late; s.o = kw
    def e(s, x): s.L.append("  " + x)
    def lab(s, x): s.L.append(x + ":")
    def uniq(s, p): s.n += 1; return f"{p}_{s.n}"
    def srd(s, d, p, size):
        s.e(f"s_mov_b32 s{d}, s{p}"); s.e(f"s_and_b32 s{d+1}, s{p+1}, 0xffff")
        s.e(f"s_mov_b32 s{d+2}, {hex(size)}"); s.e(f"s_mov_b32 s{d+3}, 0x20000")
    def stamp(s, k):
        if s.stamps:
            s.e("s_memrealtime s[90:91]"); s.e("s_waitcnt lgkmcnt(0)"); s.e(f"s_mov_b32 s{80+k}, s90")
    def stamp_fill(s, k):
        if s.stamps:
            s.e("s_memrealtime s[90:91]"); s.e("s_waitcnt lgkmcnt(0)")
            for j in range(k, 8): s.e(f"s_mov_b32 s{80+j}, s90")
    def stamp_write(s):
        if s.stamps and s.o.get("dbg"):
            e = s.e
            e("s_cmp_eq_u32 s2, 7"); e("s_cbranch_scc1 L_dbgw0"); e("s_cmp_eq_u32 s2, 5"); e("s_cbranch_scc0 L_dbgx")
            e("s_load_dwordx2 s[92:93], s[0:1], 96"); e("s_waitcnt lgkmcnt(0)"); e("s_add_u32 s92, s92, 32"); e("s_addc_u32 s93, s93, 0"); e("s_branch L_dbgw1")
            s.lab("L_dbgw0")
            e("s_load_dwordx2 s[92:93], s[0:1], 96"); e("s_waitcnt lgkmcnt(0)")
            s.lab("L_dbgw1")
            e("v_mov_b32 v250, 0"); e("s_mov_b64 exec, 1")
            for j in range(0, 8, 2):
                e(f"v_mov_b32 v252, s{80+j}"); e(f"v_mov_b32 v253, s{81+j}")
                e(f"global_store_dwordx2 v250, v[252:253], s[92:93] offset:{j*4}"); e("s_nop 1")
            e("s_mov_b64 exec, -1")
            s.lab("L_dbgx")
        elif s.stamps:
            s.e("s_add_u32 s92, s28, 0x10000000"); s.e("s_addc_u32 s93, s29, 0")
            s.e("s_lshl_b32 s94, s2, 5"); s.e("v_mov_b32 v250, s94")
            s.e("s_mov_b64 exec, 1")
            for j in range(0, 8, 2):
                s.e(f"v_mov_b32 v252, s{80+j}"); s.e(f"v_mov_b32 v253, s{81+j}")
                s.e(f"global_store_dwordx2 v250, v[252:253], s[92:93] offset:{j*4}")
                s.e("s_nop 1")
            s.e("s_mov_b64 exec, -1")
    def wred(s, op, t, src):
        e = s.e
        e("s_nop 1")
        e(f"{op}_dpp v{t}, v{src}, v{src} row_ror:8 row_mask:0xf bank_mask:0xf")
        for r in (4, 2, 1):
            e("s_nop 1"); e(f"{op}_dpp v{t}, v{t}, v{t} row_ror:{r} row_mask:0xf bank_mask:0xf")
        e("s_nop 1"); e(f"{op}_dpp v{t}, v{t}, v{t} row_bcast:15 row_mask:0xa bank_mask:0xf")
        e("s_nop 1"); e(f"{op}_dpp v{t}, v{t}, v{t} row_bcast:31 row_mask:0xc bank_mask:0xf")
    def poll(s, loads, t0, wide=4, pre=None, execs=None, xloads=(), xtags=()):
        e = s.e
        lp = s.uniq("L_poll"); dn = s.uniq("L_polld")
        e(f"s_mov_b32 s56, {SPIN}")
        s.lab(lp)
        for k, (d, vo, so, imm) in enumerate(loads):
            if execs and execs.get(k): e("s_mov_b32 exec_lo, -1"); e("s_mov_b32 exec_hi, 0")
            off = f" offset:{imm}" if imm else ""
            e(f"buffer_load_dwordx{wide} v[{d}:{d+wide-1}], v{vo}, s[36:39], {so} offen{off} sc1")
            if execs and execs.get(k): e("s_mov_b64 exec, -1")
        for x in xloads: e(x)
        e("s_waitcnt vmcnt(0)")
        tags = [d+q for (d, vo, so, imm) in loads for q in ([2] if wide == 3 else range(1, wide, 2))] + list(xtags)
        if len(tags) <= 2:
            e(f"v_xor_b32 v{t0}, s30, v{tags[0]}")
            if len(tags) == 2: e(f"v_xor_b32 v{t0+1}, s30, v{tags[1]}"); e(f"v_or_b32 v{t0}, v{t0}, v{t0+1}")
        else:
            e(f"v_max3_u32 v{t0}, s30, v{tags[0]}, v{tags[1]}"); e(f"v_min3_u32 v{t0+1}, s30, v{tags[0]}, v{tags[1]}")
            r = tags[2:]
            while r:
                a = r[0]; b = r[1] if len(r) > 1 else r[0]; r = r[2:]
                e(f"v_max3_u32 v{t0}, v{t0}, v{a}, v{b}"); e(f"v_min3_u32 v{t0+1}, v{t0+1}, v{a}, v{b}")
            e(f"v_xor_b32 v{t0}, v{t0}, v{t0+1}")
        e(f"v_cmp_ne_u32 vcc, 0, v{t0}")
        e("s_sub_u32 s56, s56, 1")
        e("s_cmp_eq_u32 s56, 0"); e(f"s_cbranch_scc1 {dn}")
        e("s_and_b64 vcc, exec, vcc")
        e(f"s_cbranch_vccnz {lp}")
        s.lab(dn)
    def ppoll(s, gens, t0, consume, execs=None):
        e = s.e; G = len(gens); n = len(gens[0])
        lp = s.uniq("L_pp"); jn = s.uniq("L_ppj")
        def issue(g):
            for k, (d, vo, so, imm, wide) in enumerate(gens[g]):
                if execs and execs.get(k): e("s_mov_b32 exec_hi, 0")
                off = f" offset:{imm}" if imm else ""
                e(f"buffer_load_dwordx{wide} v[{d}:{d+wide-1}], v{vo}, s[36:39], {so} offen{off} sc1")
                if execs and execs.get(k): e("s_mov_b64 exec, -1")
        for g in range(G): issue(g)
        e(f"s_mov_b32 s56, {SPIN}")
        s.lab(lp)
        for g in range(G):
            e(f"s_waitcnt vmcnt({n*(G-1)})")
            tags = [d+q for (d, vo, so, imm, wide) in gens[g] for q in ([2] if wide == 3 else range(1, wide, 2))]
            if len(tags) == 1:
                e(f"v_cmp_ne_u32 vcc, s30, v{tags[0]}")
            elif len(tags) == 2:
                e(f"v_xor_b32 v{t0}, s30, v{tags[0]}"); e(f"v_xor_b32 v{t0+1}, s30, v{tags[1]}"); e(f"v_or_b32 v{t0}, v{t0}, v{t0+1}")
                e(f"v_cmp_ne_u32 vcc, 0, v{t0}")
            else:
                e(f"v_max3_u32 v{t0}, s30, v{tags[0]}, v{tags[1]}"); e(f"v_min3_u32 v{t0+1}, s30, v{tags[0]}, v{tags[1]}")
                r = tags[2:]
                while r:
                    a = r[0]; b = r[1] if len(r) > 1 else r[0]; r = r[2:]
                    e(f"v_max3_u32 v{t0}, v{t0}, v{a}, v{b}"); e(f"v_min3_u32 v{t0+1}, v{t0+1}, v{a}, v{b}")
                e(f"v_cmp_ne_u32 vcc, v{t0}, v{t0+1}")
            e("s_nop 0"); e("s_and_b64 vcc, exec, vcc")
            e(f"s_cbranch_vccz {jn}_g{g}")
            issue(g)
        e("s_sub_u32 s56, s56, 1"); e("s_cmp_eq_u32 s56, 0"); e(f"s_cbranch_scc0 {lp}")
        e("s_waitcnt vmcnt(0)")
        for g in range(G):
            s.lab(f"{jn}_g{g}")
            consume(g)
            if g < G-1: e(f"s_branch {jn}")
        s.lab(jn)
    def dma(s, n, voff, srd, sreg, step, ldsbase, nt=False):
        e = s.e
        nt = True
        for i in range(n):
            e(f"s_mov_b32 m0, {ldsbase + i*1024}")
            if i: e(f"s_add_u32 s{sreg}, s{sreg}, {step}")
            else: e("s_nop 0")
            e(f"buffer_load_dwordx4 v{voff}, s[{srd}:{srd+3}], s{sreg} offen" + (" nt" if nt else "") + " lds")
    def gemv(s, acc, va, vb, RB, steps, r0, batch=10, astep=64, zero=True):
        e = s.e
        k = 0; first = zero
        while k < steps:
            nb = min(batch, steps - k)
            for j in range(nb):
                r = r0 + j*8; st = k + j
                e(f"ds_read_b128 v[{r}:{r+3}], v{va} offset:{st*astep}")
                e(f"ds_read_b64_tr_b16 v[{r+4}:{r+5}], v{vb} offset:{st*32*RB}")
                e(f"ds_read_b64_tr_b16 v[{r+6}:{r+7}], v{vb} offset:{st*32*RB + 4*RB}")
            e("s_waitcnt lgkmcnt(0)")
            for j in range(nb):
                r = r0 + j*8
                c = "0" if first else f"v[{acc}:{acc+3}]"; first = False
                e(f"v_mfma_f32_16x16x32_bf16 v[{acc}:{acc+3}], v[{r}:{r+3}], v[{r+4}:{r+7}], {c}")
            k += nb
        e("s_nop 7")
    def gemv4(s, acc, va, vb, RB, steps, r0):
        e = s.e
        for st in range(steps):
            r = r0 + st*20
            e(f"ds_read_b128 v[{r}:{r+3}], v{va} offset:{st*64}")
            for q in range(4):
                e(f"ds_read_b64_tr_b16 v[{r+4+4*q}:{r+5+4*q}], v{vb} offset:{st*32*RB + q*32}")
                e(f"ds_read_b64_tr_b16 v[{r+6+4*q}:{r+7+4*q}], v{vb} offset:{st*32*RB + 4*RB + q*32}")
        for st in range(steps):
            r = r0 + st*20
            e(f"s_waitcnt lgkmcnt({min(15, (steps-1-st)*9)})")
            for q in range(4):
                c = "0" if st == 0 else f"v[{acc+4*q}:{acc+4*q+3}]"
                e(f"v_mfma_f32_16x16x32_bf16 v[{acc+4*q}:{acc+4*q+3}], v[{r}:{r+3}], v[{r+4+4*q}:{r+7+4*q}], {c}")
        e("s_nop 7")
    def gemv_addr(s, va, vb, abase, arow, bbase, RB, t):
        e = s.e
        e(f"v_and_b32 v{t}, 1, v0"); e(f"v_mul_u32_u24 v{va}, {arow}, v{t}")
        e(f"v_lshrrev_b32 v{t}, 4, v0"); e(f"v_lshl_add_u32 v{va}, v{t}, 4, v{va}")
        e(f"v_add_u32 v{va}, {abase}, v{va}")
        e(f"v_lshlrev_b32 v{vb}, 3, v{t}")
        e(f"v_bfe_u32 v{t}, v0, 2, 2"); e(f"v_add_u32 v{vb}, v{vb}, v{t}")
        e(f"v_mul_u32_u24 v{vb}, {RB}, v{vb}")
        e(f"v_and_b32 v{t}, 3, v0"); e(f"v_lshl_add_u32 v{vb}, v{t}, 3, v{vb}")
        if isinstance(bbase, int): e(f"v_add_u32 v{vb}, {bbase}, v{vb}")
        else: e(f"v_add_u32 v{vb}, {bbase}, v{vb}")
    def unpack(s, lo, hi, src):
        s.e(f"v_and_b32 v{hi}, 0xffff0000, v{src}"); s.e(f"v_lshlrev_b32 v{lo}, 16, v{src}")
    def rnd2(s, a, b, t):
        s.e(f"v_cvt_pk_bf16_f32 v{t}, v{a}, v{b}"); s.unpack(a, b, t)

    def save_state(s, bexpr):
        e = s.e
        e("s_lshl_b32 s57, s31, 1"); e(f"s_add_u32 s57, s57, {bexpr}"); e("s_mul_i32 s57, s57, 544"); e(f"s_add_u32 s57, s57, {L_ST}")
        s.wred("v_add_f32", 14, 13)
        e("v_lshrrev_b32 v15, 4, v0"); e("v_lshlrev_b32 v15, 7, v15"); e("v_and_b32 v1, 15, v0"); e("v_lshl_add_u32 v15, v1, 2, v15")
        e("v_add_u32 v15, s57, v15")
        e("s_mov_b32 exec_lo, 0x00ff00ff"); e("s_mov_b32 exec_hi, 0x00ff00ff")
        for r in range(4): e(f"ds_write_b32 v15, v{16+r} offset:{r*32}")
        e("s_mov_b32 exec_lo, 0"); e("s_mov_b32 exec_hi, 0x80000000")
        e("v_mov_b32 v13, v14"); e("v_mov_b32 v15, s57")
        e("ds_write_b64 v15, v[12:13] offset:512")
        e("s_mov_b64 exec, -1")
    def init_state(s):
        e = s.e
        e(f"v_mov_b32 v12, {hex(NEG)}"); e("v_mov_b32 v13, 0")
        for r in range(4): e(f"v_mov_b32 v{16+r}, 0")
    def load_q(s, b):
        e = s.e
        e("v_bfe_u32 v14, v0, 2, 2"); e("v_lshrrev_b32 v15, 4, v0"); e("v_lshl_add_u32 v14, v15, 2, v14"); e("v_lshlrev_b32 v14, 4, v14")
        e(f"v_add_u32 v14, {L_Q + b*256}, v14")
        e(f"ds_read_b128 v[28:31], v14")
        e("v_and_b32 v15, 3, v0")
        e("s_waitcnt lgkmcnt(0)")
        for t in range(4):
            e(f"v_cmp_eq_u32 vcc, {t}, v15"); e("s_nop 1")
            for r in range(4): e(f"v_cndmask_b32 v{40+4*t+r}, 0, v{28+r}, vcc")
    def tile_loads(s, j, treg, dummy=False):
        e = s.e
        e(f"s_lshr_b32 s52, s{treg}, 9"); e("s_lshl_b32 s52, s52, 5"); e("s_add_u32 s52, s52, s32"); e("s_lshl_b32 s52, s52, 22")
        e(f"s_and_b32 s53, s{treg}, 511"); e("s_lshl_b32 s53, s53, 13"); e("s_add_u32 s52, s52, s53"); e("s_add_u32 s53, s52, 4096")
        base = 64 + 64*j
        pg = s.o.get("pg", 4); pw = s.o.get("pace", 0) if dummy else 0
        def pace(k):
            if pw and k % pg == 0 and (j*17 + k) > pw: e(f"s_waitcnt vmcnt({pw})")
        for u in range(8):
            r = base + 4*u; pace(u)
            e(f"buffer_load_dwordx4 v[{r}:{r+3}], v2, s[40:43], s{52 + u//4} offen offset:{(u%4)*1024} nt")
        for u in range(8):
            r = base + 32 + 4*u; pace(8+u)
            e(f"buffer_load_dwordx4 v[{r}:{r+3}], v3, s[44:47], s{52 + u//4} offen offset:{(u%4)*1024} nt")
        if dummy:
            e("buffer_load_dword v8, v3, s[40:43], s52 offen nt")
        else:
            e(f"v_mov_b32 v{5+j}, 1"); e("s_mov_b64 exec, 1")
            e(f"buffer_atomic_add v{5+j}, v4, s[36:39], 0 offen sc0")
            e("s_mov_b64 exec, -1")
    def consume(s, j):
        e = s.e
        base = 64 + 64*j
        if s.o.get("nocomp"): return
        for t in range(4):
            for a in range(2):
                u = 4*a + t; r = base + 4*u; acc = 20 + 4*a
                c = "0" if t == 0 else f"v[{acc}:{acc+3}]"
                e(f"v_mfma_f32_16x16x32_bf16 v[{acc}:{acc+3}], v[{r}:{r+3}], v[{40+4*t}:{43+4*t}], {c}")
        e("s_nop 7")
        D = "row_mask:0xf"
        e(f"v_add_f32_dpp v9, v21, v20 row_ror:12 {D} bank_mask:0x1")
        e(f"v_add_f32_dpp v9, v24, v25 row_ror:4 {D} bank_mask:0x2")
        e(f"v_add_f32_dpp v9, v22, v9 row_ror:8 {D} bank_mask:0x1")
        e(f"v_add_f32_dpp v9, v26, v9 row_ror:12 {D} bank_mask:0x2")
        e(f"v_add_f32_dpp v9, v23, v9 row_ror:4 {D} bank_mask:0x1")
        e(f"v_add_f32_dpp v9, v27, v9 row_ror:8 {D} bank_mask:0x2")
        s.wred("v_max_f32", 14, 9)
        e("s_nop 0"); e("v_readlane_b32 s54, v14, 63"); e("s_nop 1")
        e("v_max_f32 v14, s54, v12")
        e("v_sub_f32 v15, v12, v14"); e("v_sub_f32 v10, v9, v14")
        e("v_mul_f32 v15, s55, v15"); e("v_mul_f32 v10, s55, v10")
        e("v_exp_f32 v15, v15"); e("v_exp_f32 v10, v10")
        e("v_mov_b32 v12, v14")
        e("v_fma_f32 v13, v13, v15, v10")
        for r in range(4): e(f"v_mul_f32 v{16+r}, v{16+r}, v15")
        e("v_cvt_pk_bf16_f32 v10, v10, v10")
        e("s_nop 1")
        def ands(u):
            b = 28 + 4*(u & 1)
            for r in range(4): e(f"v_and_b32_dpp v{b+r}, v10, v{36+r} row_newbcast:{u} row_mask:0xf bank_mask:0xf")
        ands(0)
        for u in range(8):
            if u < 7: ands(u+1)
            else: e("s_nop 1")
            r = base + 32 + 4*u; b = 28 + 4*(u & 1)
            e(f"v_mfma_f32_16x16x32_bf16 v[16:19], v[{r}:{r+3}], v[{b}:{b+3}], v[16:19]")
    def streamer(s):
        e = s.e; NB = s.NB
        s.srd(40, 6, 0x10000000); s.srd(44, 8, 0x10000000)
        e("v_bfe_u32 v1, v0, 2, 2"); e("v_lshlrev_b32 v2, 8, v1")
        e("v_and_b32 v1, 3, v0"); e("v_lshl_add_u32 v2, v1, 4, v2")
        e("v_lshrrev_b32 v1, 4, v0"); e("v_lshl_add_u32 v2, v1, 6, v2")
        e("v_lshlrev_b32 v3, 4, v0")
        if s.o.get("klin"): e("v_mov_b32 v2, v3")
        e("s_lshl_b32 s57, s33, 2"); e("s_add_u32 s57, s57, s31")
        def prologue(j0, j1):
            for j in range(j0, j1): s.tile_loads(j, 60+j, dummy=True)
        for j in range(NB): e(f"s_add_u32 s{60+j}, s57, {32*j}")
        p0 = s.o.get("p0", 1); p1 = s.o.get("p1", 1)
        hyb = s.o.get("hyb", 0)
        pfc = s.o.get("pfc", 0)
        if hyb:
            assert NB == 2
            e("s_cmp_eq_u32 s95, 1"); e("s_cbranch_scc1 L_nopf")
            if s.o.get("xt", 1):
                e("s_lshr_b32 s63, s33, 1"); e("s_lshl_b32 s63, s63, 2"); e("s_add_u32 s63, s63, s31"); e("s_add_u32 s63, s63, 128")
                s.tile_loads(2, 63, dummy=True)
            prologue(0, NB)
            s.lab("L_nopf")
        else:
            e("s_barrier")
            if pfc: e(f"s_cmp_lt_u32 s33, {pfc}"); e("s_cbranch_scc1 L_nopf")
            prologue(0, p0)
            if pfc: s.lab("L_nopf")
        e(f"s_lshl_b32 s58, s32, 13"); e(f"s_add_u32 s58, s58, {W_CNT}"); e("v_mov_b32 v4, s58")
        for j in range(NB):
            e(f"s_add_u32 s58, s57, {(32*(NB+j) - 2*NB*32) & 0xffffffff}"); e(f"v_mov_b32 v{5+j}, s58")
        e("v_and_b32 v1, 15, v0")
        for r in range(4): e(f"v_mov_b32 v{36+r}, 0")
        e("v_mov_b32 v14, 0xffff"); e("v_mov_b32 v15, 0xffff0000")
        for r in range(4):
            e(f"v_cmp_eq_u32 vcc, {2*r}, v1"); e("s_nop 1"); e(f"v_cndmask_b32 v{36+r}, v{36+r}, v14, vcc")
            e(f"v_cmp_eq_u32 vcc, {2*r+1}, v1"); e("s_nop 1"); e(f"v_cndmask_b32 v{36+r}, v{36+r}, v15, vcc")
        e(f"v_mov_b32 v9, {hex(NEG)}")
        s.init_state()
        e(f"s_mov_b32 s55, {hex(C_SM)}")
        e("s_mov_b32 s59, 0")
        e("s_mov_b32 s64, 0")
        e("s_waitcnt lgkmcnt(0)"); e(f"s_add_u32 s30, s30, {hex(TAGC)}")
        if hyb:
            e("s_cmp_eq_u32 s95, 1"); e("s_cbranch_scc0 L_pb1")
            e("s_barrier")
            e("s_barrier")
            prologue(0, NB)
            s.lab("L_pb1")
            e("s_barrier")
        else:
            if not s.o.get("noba"): e("s_barrier")
            prologue(p0, p0+p1)
            e("s_barrier")
            if pfc:
                e(f"s_cmp_lt_u32 s33, {pfc}"); e("s_cbranch_scc0 L_pfdone")
                prologue(0, p0)
                s.lab("L_pfdone")
            prologue(p0+p1, NB)
        s.load_q(0)
        if hyb and s.o.get("xt", 1):
            e("s_cmp_eq_u32 s95, 1"); e("s_cbranch_scc1 L_stream")
            e(f"s_waitcnt vmcnt({2*17})")
            s.consume(2)
        s.lab("L_stream")
        for j in range(NB):
            s.lab(f"L_pos{j}")
            e(f"s_waitcnt vmcnt({(NB-1)*17})")
            e("s_cmp_eq_u32 s64, 0"); e(f"s_cbranch_scc1 L_nd{j}")
            e("s_waitcnt vmcnt(0)")
            s.lab(f"L_nd{j}")
            e(f"s_lshr_b32 s57, s{60+j}, 9"); e("s_cmp_lg_u32 s57, s59"); e(f"s_cbranch_scc1 L_sw{j}")
            s.lab(f"L_swr{j}")
            e(f"v_readfirstlane_b32 s58, v{5+j}")
            s.consume(j)
            e("s_cmp_eq_u32 s64, 0"); e(f"s_cbranch_scc0 L_dr{j}")
            e(f"s_add_u32 s{60+j}, s58, {2*NB*32}")
            e(f"s_cmp_ge_u32 s{60+j}, 1024"); e(f"s_cbranch_scc1 L_stop{j}")
            s.tile_loads(j, 60+j)
            if j == NB-1: e("s_branch L_pos0")
        for j in range(NB):
            nxt = f"L_pos{(j+1) % NB}"
            s.lab(f"L_stop{j}")
            e(f"s_mov_b32 s64, {NB-1}"); e(f"s_branch {nxt}")
            s.lab(f"L_dr{j}")
            e("s_sub_u32 s64, s64, 1"); e("s_cmp_eq_u32 s64, 0"); e("s_cbranch_scc1 L_sdone")
            e(f"s_branch {nxt}")
            s.lab(f"L_sw{j}")
            s.save_state(0)
            s.init_state()
            s.load_q(1)
            e("s_mov_b32 s59, 1")
            e(f"s_branch L_swr{j}")
        s.lab("L_sdone")
        e("s_nop 7")
        s.save_state("s59")
        e("s_cmp_eq_u32 s59, 1"); e("s_cbranch_scc1 L_ssaved")
        s.init_state(); e("s_nop 1")
        s.save_state(1)
        s.lab("L_ssaved")
        e("s_waitcnt lgkmcnt(0)")
        e("s_barrier")
```

```python
import sys
from gk1 import *

class K(G):
    def lanes16(s): s.e("s_mov_b64 exec, 0xffff")
    def allx(s): s.e("s_mov_b64 exec, -1")
    def unpack_gr(s, d, g):
        s.e(f"v_lshlrev_b32 v{d}, 16, v{g}"); s.e(f"v_lshlrev_b32 v{d+1}, 16, v{g+2}")
        s.e(f"v_and_b32 v{d+2}, 0xffff0000, v{g}"); s.e(f"v_and_b32 v{d+3}, 0xffff0000, v{g+2}")
    def ln_mod(s, X, SG, CG, t):
        e = s.e
        for b in range(2):
            xs = [X + 4*j + 2*b + q for j in range(5) for q in range(2)]
            e(f"v_add_f32 v{t}, v{xs[0]}, v{xs[1]}")
            for r in xs[2:]: e(f"v_add_f32 v{t}, v{t}, v{r}")
            s.wred("v_add_f32", t+1, t)
            e("s_nop 0"); e(f"v_readlane_b32 s57, v{t+1}, 63"); e("s_nop 1")
            e(f"v_mov_b32 v{t}, s57"); e(f"v_mul_f32 v{t}, {hex(f2u(1/640))}, v{t}")
            e(f"v_sub_f32 v{t+2}, v{xs[0]}, v{t}"); e(f"v_mul_f32 v{t+3}, v{t+2}, v{t+2}")
            for r in xs[1:]:
                e(f"v_sub_f32 v{t+2}, v{r}, v{t}"); e(f"v_fma_f32 v{t+3}, v{t+2}, v{t+2}, v{t+3}")
            s.wred("v_add_f32", t+1, t+3)
            e("s_nop 0"); e(f"v_readlane_b32 s57, v{t+1}, 63"); e("s_nop 1")
            e(f"v_mov_b32 v{t+1}, s57"); e(f"v_mul_f32 v{t+1}, {hex(f2u(1/640))}, v{t+1}")
            s.rnd2(t, t+1, t+2)
            e(f"v_add_f32 v{t+1}, {hex(f2u(1e-5))}, v{t+1}"); e(f"v_mov_b32 v{t+3}, 0"); s.rnd2(t+1, t+3, t+2)
            e(f"v_sqrt_f32 v{t+1}, v{t+1}"); e("s_nop 0"); s.rnd2(t+1, t+3, t+2)
            e(f"v_rcp_f32 v{t+1}, v{t+1}"); e("s_nop 0")
            for j in range(5):
                a, c = X + 4*j + 2*b, X + 4*j + 2*b + 1
                e(f"v_sub_f32 v{a}, v{a}, v{t}"); e(f"v_sub_f32 v{c}, v{c}, v{t}"); s.rnd2(a, c, t+2)
                e(f"v_mul_f32 v{a}, v{a}, v{t+1}"); e(f"v_mul_f32 v{c}, v{c}, v{t+1}"); s.rnd2(a, c, t+2)
                sg, cg = SG + 4*j, CG + 4*j
                for (dst, g) in ((t+4, cg), (t+6, sg)):
                    if b == 0:
                        e(f"v_lshlrev_b32 v{dst}, 16, v{g}"); e(f"v_lshlrev_b32 v{dst+1}, 16, v{g+2}")
                    else:
                        e(f"v_and_b32 v{dst}, 0xffff0000, v{g}"); e(f"v_and_b32 v{dst+1}, 0xffff0000, v{g+2}")
                e(f"v_add_f32 v{t+4}, 1.0, v{t+4}"); e(f"v_add_f32 v{t+5}, 1.0, v{t+5}"); s.rnd2(t+4, t+5, t+2)
                e(f"v_mul_f32 v{a}, v{a}, v{t+4}"); e(f"v_mul_f32 v{c}, v{c}, v{t+5}"); s.rnd2(a, c, t+2)
                e(f"v_add_f32 v{a}, v{a}, v{t+6}"); e(f"v_add_f32 v{c}, v{c}, v{t+7}")
                e(f"v_cvt_pk_bf16_f32 v{t+2}, v{a}, v{c}")
                e(f"ds_write_b32 v{t+8}, v{t+2} offset:{b*1280 + j*256}")
    def silu(s, x, t):
        e = s.e
        e(f"v_mul_f32 v{t}, {hex(f2u(-math.log2(math.e)))}, v{x}"); e(f"v_exp_f32 v{t}, v{t}"); e("s_nop 0")
        e(f"v_add_f32 v{t}, 1.0, v{t}"); e(f"v_rcp_f32 v{t}, v{t}"); e("s_nop 0"); e(f"v_mul_f32 v{x}, v{x}, v{t}")
    def unit_dma(s, srd, rowb, usreg, lds):
        e = s.e
        e("v_lshrrev_b32 v1, 1, v0"); e(f"v_mul_u32_u24 v2, {rowb}, v1"); e("v_and_b32 v1, 1, v0"); e("v_lshl_add_u32 v2, v1, 4, v2")
        e(f"s_lshl_b32 s52, s{usreg}, 5")
        s.dma(20, 2, srd, 52, 32*rowb, lds)
    def unit_pub(s, acc, usreg, wbase):
        e = s.e
        e(f"v_cvt_pk_bf16_f32 v4, v{acc}, v{acc+1}"); e("v_mov_b32 v5, s30")
        e(f"s_lshl_b32 s52, s{usreg}, 7"); e(f"s_add_u32 s52, s52, {wbase}"); e("v_lshlrev_b32 v1, 3, v0")
        s.lanes16(); e("buffer_store_dwordx2 v[4:5], v1, s[36:39], s52 offen sc1"); s.allx()
    def mod_unit(s, usreg, lds, do_act):
        e = s.e
        s.srd(40, 24, 640*3840*2)
        if do_act:
            s.srd(48, 22, 2560); e("v_lshlrev_b32 v3, 2, v0")
            for b in range(2):
                for j in range(5): e(f"buffer_load_dword v{16+b*5+j}, v3, s[48:51], 0 offen offset:{b*1280+j*256}")
        s.unit_dma(40, 7680, usreg, lds)
        if do_act:
            e("s_waitcnt vmcnt(20)"); e(f"v_add_u32 v3, {L_ACT}, v3")
            for q in range(10):
                s.unpack(8, 9, 16+q); s.silu(8, 10); s.silu(9, 11)
                e("v_cvt_pk_bf16_f32 v8, v8, v9"); e(f"ds_write_b32 v3, v8 offset:{(q//5)*1280+(q%5)*256}")
        s.gemv_addr(6, 7, L_ACT, 1280, lds, 32, 1)
        e("s_waitcnt vmcnt(0) lgkmcnt(0)")
        s.gemv(12, 6, 7, 32, 20, 16)
        s.unit_pub(12, usreg, W_MOD)
    def slab64_dma(s, srd, rowb, lds):
        e = s.e
        e("v_lshrrev_b32 v1, 3, v0"); e(f"v_mul_u32_u24 v2, {rowb}, v1"); e("v_and_b32 v1, 7, v0"); e("v_lshl_add_u32 v2, v1, 4, v2")
        s.dma(20, 2, srd, 52, 8*rowb, lds)
    def pub4(s, acc, soff):
        e = s.e
        e("v_lshlrev_b32 v1, 4, v0")
        for q in range(4):
            e(f"v_mov_b32 v{200+4*q}, v{acc+4*q}"); e(f"v_mov_b32 v{201+4*q}, s30"); e(f"v_mov_b32 v{202+4*q}, v{acc+4*q+1}"); e(f"v_mov_b32 v{203+4*q}, s30")
        s.lanes16()
        for q in range(4): e(f"buffer_store_dwordx4 v[{200+4*q}:{203+4*q}], v1, s[36:39], {soff} offen offset:{q*256} sc1")
        s.allx()
    def tagwait(s):
        s.e("s_waitcnt lgkmcnt(0)"); s.e(f"s_add_u32 s30, s30, {hex(TAGC)}")
    def moda_unit(s):
        e = s.e
        s.srd(40, 24, 640*3840*2); s.srd(48, 22, 2560)
        e("s_and_b32 s66, s65, 3"); e("s_lshr_b32 s67, s65, 2")
        e("v_and_b32 v1, 31, v0"); e("v_lshrrev_b32 v3, 5, v0"); e("v_mul_u32_u24 v8, 1280, v3"); e("v_lshl_add_u32 v8, v1, 1, v8")
        e("s_mul_i32 s57, s66, 320")
        for m in range(5): e(f"buffer_load_ushort v{16+m}, v8, s[48:51], s57 offen offset:{m*64}")
        e(f"s_mul_i32 s52, s66, {160*7680}"); e("s_lshl_b32 s57, s67, 7"); e("s_add_u32 s52, s52, s57")
        s.slab64_dma(40, 7680, L_MODS)
        s.tagwait()
        e("v_mul_u32_u24 v8, 320, v3"); e("v_and_b32 v1, 31, v0"); e("v_lshl_add_u32 v8, v1, 1, v8"); e(f"v_add_u32 v8, {L_ACTA}, v8")
        e("s_waitcnt vmcnt(20)")
        for m in range(5):
            e(f"v_lshlrev_b32 v{16+m}, 16, v{16+m}"); s.silu(16+m, 10)
            e(f"v_cvt_pk_bf16_f32 v{16+m}, v{16+m}, v{16+m}"); e(f"ds_write_b16 v8, v{16+m} offset:{m*64}")
        s.gemv_addr(6, 7, L_ACTA, 320, L_MODS, 128, 1)
        e("s_waitcnt vmcnt(0) lgkmcnt(0)")
        s.stamp(4)
        s.gemv4(24, 6, 7, 128, 5, 40)
        e("s_mul_i32 s57, s66, 20480"); e("s_lshl_b32 s58, s67, 10"); e("s_add_u32 s57, s57, s58"); e(f"s_add_u32 s57, s57, {W_MODP}")
        s.pub4(24, "s57")
    def q_unit2(s):
        e = s.e
        s.srd(48, 4, 2560)
        e("s_lshr_b32 s66, s33, 1")
        e("v_lshlrev_b32 v3, 2, v0")
        for b in range(2):
            for j in range(5): e(f"buffer_load_dword v{16+b*5+j}, v3, s[48:51], 0 offen offset:{b*1280+j*256}")
        e("v_lshlrev_b32 v8, 1, v0"); e("s_mul_i32 s57, s66, 320")
        for b in range(2):
            for m in range(3):
                if m == 2: e("s_mov_b32 exec_hi, 0")
                e(f"buffer_load_ushort v{26+2*m+b}, v8, s[48:51], s57 offen offset:{b*1280+m*128}")
                if m == 2: s.allx()
        s.wq_dma()
        s.tagwait()
        e("s_cmp_lg_u32 s66, 0"); e("s_cbranch_scc1 L_noinit")
        e("s_lshl_b32 s57, s32, 13"); e(f"s_add_u32 s57, s57, {W_CNT}")
        e(f"v_mov_b32 v4, {16 if s.o.get('xt', 1) else 0}"); e("v_mov_b32 v1, 0")
        e("s_mov_b64 exec, 1"); e("buffer_store_dword v4, v1, s[36:39], s57 offen sc1"); s.allx()
        e("s_waitcnt vmcnt(21)"); e("s_branch L_init2")
        s.lab("L_noinit"); e("s_waitcnt vmcnt(20)"); s.lab("L_init2")
        X = 32
        for b in range(2):
            for j in range(5): s.unpack(X+4*j+2*b, X+4*j+2*b+1, 16+b*5+j)
        for q in range(6): e(f"v_lshlrev_b32 v{26+q}, 16, v{26+q}")
        t = 52
        for b in range(2):
            xs = [X + 4*j + 2*b + q for j in range(5) for q in range(2)]
            e(f"v_add_f32 v{t}, v{xs[0]}, v{xs[1]}")
            for r in xs[2:]: e(f"v_add_f32 v{t}, v{t}, v{r}")
            s.wred("v_add_f32", t+1, t)
            e("s_nop 0"); e(f"v_readlane_b32 s57, v{t+1}, 63"); e("s_nop 1")
            e(f"v_mov_b32 v{t}, s57"); e(f"v_mul_f32 v{t}, {hex(f2u(1/640))}, v{t}")
            e(f"v_sub_f32 v{t+2}, v{xs[0]}, v{t}"); e(f"v_mul_f32 v{t+3}, v{t+2}, v{t+2}")
            for r in xs[1:]:
                e(f"v_sub_f32 v{t+2}, v{r}, v{t}"); e(f"v_fma_f32 v{t+3}, v{t+2}, v{t+2}, v{t+3}")
            s.wred("v_add_f32", t+1, t+3)
            e("s_nop 0"); e(f"v_readlane_b32 s57, v{t+1}, 63"); e("s_nop 1")
            e(f"v_mov_b32 v{t+1}, s57"); e(f"v_mul_f32 v{t+1}, {hex(f2u(1/640))}, v{t+1}")
            s.rnd2(t, t+1, t+2)
            e(f"v_add_f32 v{t+1}, {hex(f2u(1e-5))}, v{t+1}"); e(f"v_mov_b32 v{t+3}, 0"); s.rnd2(t+1, t+3, t+2)
            e(f"v_sqrt_f32 v{t+1}, v{t+1}"); e("s_nop 0"); s.rnd2(t+1, t+3, t+2)
            e(f"v_rcp_f32 v{t+1}, v{t+1}"); e("s_nop 0")
            for m in range(3):
                a = 26+2*m+b
                e(f"v_sub_f32 v{a}, v{a}, v{t}"); s.rnd2(a, t+3, t+2)
                e(f"v_mul_f32 v{a}, v{a}, v{t+1}"); s.rnd2(a, t+3, t+2)
        e("v_lshlrev_b32 v9, 4, v0"); e("s_mul_i32 s57, s66, 2560"); e(f"s_add_u32 s57, s57, {W_MODP}")
        for w in range(2):
            for k in range(4): e(f"s_add_u32 s{68+w*4+k}, s57, {w*10240 + k*20480}")
        loads = []; ex = {}
        G0 = 64
        for w in range(2):
            for k in range(4):
                for m in range(3):
                    d = G0 + ((w*4+k)*3+m)*4
                    if m == 2:
                        ex[len(loads)] = 1
                        e(f"v_mov_b32 v{d}, 0"); e(f"v_mov_b32 v{d+1}, s30"); e(f"v_mov_b32 v{d+2}, 0"); e(f"v_mov_b32 v{d+3}, s30")
                    loads.append((d, 9, f"s{68+w*4+k}", m*1024))
        e("s_waitcnt vmcnt(0)")
        if s.sw == 5: s.stamp(1)
        s.poll([loads[21]], 10); s.poll(loads, 10, execs=ex)
        if s.sw == 5: s.stamp(4)
        e("v_lshlrev_b32 v8, 1, v0"); e(f"v_add_u32 v8, {L_H}, v8")
        for m in range(3):
            for w in range(2):
                d = [G0 + ((w*4+k)*3+m)*4 for k in range(4)]
                for b in range(2):
                    e(f"v_add_f32 v{d[0]+2*b}, v{d[0]+2*b}, v{d[1]+2*b}"); e(f"v_add_f32 v{d[2]+2*b}, v{d[2]+2*b}, v{d[3]+2*b}")
                for b in range(2): e(f"v_add_f32 v{d[0]+2*b}, v{d[0]+2*b}, v{d[2]+2*b}")
                s.rnd2(d[0], d[0]+2, 52)
            sa = G0 + m*4; ca = G0 + (12+m)*4
            e(f"v_add_f32 v{ca}, 1.0, v{ca}"); e(f"v_add_f32 v{ca+2}, 1.0, v{ca+2}"); s.rnd2(ca, ca+2, 52)
            a = 26+2*m
            e(f"v_mul_f32 v{a}, v{a}, v{ca}"); e(f"v_mul_f32 v{a+1}, v{a+1}, v{ca+2}"); s.rnd2(a, a+1, 52)
            e(f"v_add_f32 v{a}, v{a}, v{sa}"); e(f"v_add_f32 v{a+1}, v{a+1}, v{sa+2}")
            e(f"v_cvt_pk_bf16_f32 v{a}, v{a}, v{a+1}")
            if m == 2: e("s_mov_b32 exec_hi, 0")
            e(f"ds_write_b16 v8, v{a} offset:{m*128}"); e(f"ds_write_b16_d16_hi v8, v{a} offset:{320+m*128}")
        s.allx()
        s.q_gemv_pub()
        s.q_gather()
    def q_gemv_pub(s):
        e = s.e
        e("s_sub_u32 s67, s31, 5"); e("s_lshr_b32 s66, s33, 1")
        e("s_mul_i32 s57, s67, 20480"); e(f"s_add_u32 s57, s57, {L_WQ}")
        s.gemv_addr(6, 7, L_H, 320, "s57", 128, 1)
        e("s_lshl_b32 s57, s32, 13"); e("s_lshl_b32 s58, s66, 11"); e("s_add_u32 s57, s57, s58"); e("s_lshl_b32 s58, s67, 10"); e("s_add_u32 s57, s57, s58")
        e(f"s_add_u32 s59, s57, {W_QP}")
        e("s_waitcnt vmcnt(0) lgkmcnt(0)")
        e("s_barrier")
        s.gemv4(24, 6, 7, 128, 5, 64)
        s.pub4(24, "s59")
        if s.sw == 5: s.stamp(5)
        e("s_barrier")
    def wq_dma(s):
        e = s.e
        s.srd(40, 10, 640*4096*2)
        e("s_sub_u32 s67, s31, 5"); e("s_lshr_b32 s66, s33, 1")
        e(f"s_mul_i32 s52, s66, {160*8192}"); e("s_lshl_b32 s57, s32, 8"); e("s_add_u32 s52, s52, s57"); e("s_lshl_b32 s57, s67, 7"); e("s_add_u32 s52, s52, s57")
        e("v_lshrrev_b32 v1, 3, v0"); e("v_mul_u32_u24 v2, 8192, v1"); e("v_and_b32 v1, 7, v0"); e("v_lshl_add_u32 v2, v1, 4, v2")
        e("s_mul_i32 s53, s67, 20480"); e(f"s_add_u32 s53, s53, {L_WQ}")
        for i in range(20):
            e("s_mov_b32 m0, s53"); e("s_add_u32 s53, s53, 1024")
            e("buffer_load_dwordx4 v2, s[40:43], s52 offen nt lds")
            e(f"s_add_u32 s52, s52, {8*8192}")
    def q_gather(s):
        e = s.e
        e("v_lshlrev_b32 v9, 4, v0")
        e("s_lshl_b32 s57, s32, 13"); e(f"s_add_u32 s57, s57, {W_QP}"); e("s_add_u32 s58, s57, 4096")
        loads = [(64+(k*2+hf)*4, 9, "s57" if k < 2 else "s58", (k % 2)*2048 + hf*1024) for k in range(4) for hf in range(2)]
        s.poll(loads, 10)
        if s.sw == 5: s.stamp(6)
        e("v_lshlrev_b32 v3, 1, v0"); e(f"v_add_u32 v3, {L_Q}, v3")
        for hf in range(2):
            d = [64+(k*2+hf)*4 for k in range(4)]
            for b in range(2):
                e(f"v_add_f32 v{d[0]+2*b}, v{d[0]+2*b}, v{d[1]+2*b}"); e(f"v_add_f32 v{d[2]+2*b}, v{d[2]+2*b}, v{d[3]+2*b}")
            for b in range(2): e(f"v_add_f32 v{d[0]+2*b}, v{d[0]+2*b}, v{d[2]+2*b}")
            e(f"v_cvt_pk_bf16_f32 v{d[0]}, v{d[0]}, v{d[0]+2}")
            e(f"ds_write_b16 v3, v{d[0]} offset:{hf*128}"); e(f"ds_write_b16_d16_hi v3, v{d[0]} offset:{256+hf*128}")
        e("s_waitcnt lgkmcnt(0)")
    def combine(s, base, np_):
        e = s.e
        e("s_mul_i32 s58, s57, 544"); e(f"s_add_u32 s58, s58, {base}")
        e("v_lshlrev_b32 v1, 3, v0"); e("v_add_u32 v1, s58, v1"); e("v_mov_b32 v2, s58")
        for p in range(np_):
            e(f"ds_read_b64 v[{32+2*p}:{33+2*p}], v1 offset:{p*1088}")
            e(f"ds_read_b64 v[{64+2*p}:{65+2*p}], v2 offset:{p*1088+512}")
        e("s_waitcnt lgkmcnt(0)")
        e("v_max_f32 v18, v64, v66")
        for p in range(2, np_): e(f"v_max_f32 v18, v18, v{64+2*p}")
        e(f"s_mov_b32 s55, {hex(C_SM)}")
        for p in range(np_):
            e(f"v_sub_f32 v{64+2*p}, v{64+2*p}, v18"); e(f"v_mul_f32 v{64+2*p}, s55, v{64+2*p}"); e(f"v_exp_f32 v{64+2*p}, v{64+2*p}")
        e("s_nop 0")
        e("v_mul_f32 v16, v32, v64"); e("v_mul_f32 v17, v33, v64"); e("v_mul_f32 v19, v65, v64")
        for p in range(1, np_):
            e(f"v_fma_f32 v16, v{32+2*p}, v{64+2*p}, v16"); e(f"v_fma_f32 v17, v{33+2*p}, v{64+2*p}, v17"); e(f"v_fma_f32 v19, v{65+2*p}, v{64+2*p}, v19")
    def pub_tile(s, acc, soff):
        e = s.e
        e(f"v_mov_b32 v4, v{acc}"); e("v_mov_b32 v5, s30"); e(f"v_mov_b32 v6, v{acc+1}"); e("v_mov_b32 v7, s30")
        s.lanes16(); e(f"buffer_store_dwordx4 v[4:7], v1, s[36:39], {soff} offen sc1"); s.allx(); e("s_nop 1")
    def xrow_sum(s, r, t):
        e = s.e
        e(f"ds_bpermute_b32 v{t+2}, v{t}, v{r}"); e("s_waitcnt lgkmcnt(0)"); e(f"v_add_f32 v{r}, v{r}, v{t+2}")
        e(f"ds_bpermute_b32 v{t+2}, v{t+1}, v{r}"); e("s_waitcnt lgkmcnt(0)"); e(f"v_add_f32 v{r}, v{r}, v{t+2}")

    def roles(s):
        e = s.e
        e("s_mov_b32 s34, 0"); e("s_mov_b32 s35, 0")
        e("s_cmp_lt_u32 s33, 5"); e("s_cbranch_scc1 L_roled")
        e("s_mov_b32 s34, 1"); e("s_mov_b32 s35, s32")
        e("s_cmp_eq_u32 s33, 5"); e("s_cbranch_scc1 L_roled")
        e("s_mov_b32 s34, 2")
        e("s_cmp_eq_u32 s33, 7"); e("s_cbranch_scc1 L_roled")
        e("s_mov_b32 s34, 1"); e("s_add_u32 s35, s32, 32")
        e("s_cmp_lt_u32 s32, 22"); e("s_cbranch_scc1 L_roled")
        e("s_mov_b32 s34, 2"); e("s_add_u32 s35, s32, 10")
        e("s_cmp_lt_u32 s32, 30"); e("s_cbranch_scc1 L_roled")
        e("s_mov_b32 s34, 3")
        s.lab("L_roled")

    def helpers(s):
        e = s.e
        e("s_cmp_eq_u32 s95, 1"); e("s_cbranch_scc1 L_hA")
        s.tagwait()
        e("s_cmp_eq_u32 s31, 5"); e("s_cbranch_scc0 L_hb1")
        s.q_gather()
        e("s_branch L_hb1")
        s.lab("L_hA")
        e("s_cmp_eq_u32 s31, 5"); e("s_cbranch_scc1 L_hq")
        e("s_cmp_eq_u32 s31, 6"); e("s_cbranch_scc1 L_hq6")
        e("s_cmp_eq_u32 s31, 4"); e("s_cbranch_scc0 L_hb0")
        e("s_cmp_lt_u32 s96, 80"); e("s_cbranch_scc0 L_hb0")
        e("s_mov_b32 s65, s96")
        s.moda_unit()
        s.stamp(1)
        e("s_branch L_hba")
        s.lab("L_hq"); s.q_unit2(); e("s_branch L_hb1")
        s.lab("L_hq6"); s.wq_dma(); s.tagwait(); s.q_gemv_pub(); e("s_branch L_hb1")
        s.lab("L_hb0"); s.tagwait()
        s.lab("L_hba"); e("s_barrier"); e("s_barrier")
        s.lab("L_hb1")
        e("s_barrier")
        s.stamp(2)
        e("s_cmp_eq_u32 s31, 4"); e("s_cbranch_scc1 L_h4")
        if s.o.get("notail"): e("s_cmp_eq_u32 s34, 0"); e("s_cbranch_scc0 L_hb2"); e("s_cmp_eq_u32 s31, 6"); e("s_cbranch_scc0 L_hb2")
        e("s_cmp_eq_u32 s34, 1"); e("s_cbranch_scc1 L_hffn")
        e("s_cmp_eq_u32 s34, 0"); e("s_cbranch_scc0 L_hb2")
        e("s_cmp_eq_u32 s31, 7"); e("s_cbranch_scc1 L_hwo")
        e("s_cmp_eq_u32 s31, 6"); e("s_cbranch_scc0 L_hb2")
        e("s_lshl_b32 s65, s33, 5"); e("s_add_u32 s65, s65, s32"); e("s_add_u32 s65, s65, 80")
        s.mod_unit(65, L_MOD2, True)
        e("s_branch L_hb2")
        s.lab("L_hwo")
        s.srd(40, 12, 4096*640*2)
        e("v_lshrrev_b32 v1, 4, v0"); e("v_mul_u32_u24 v2, 1280, v1"); e("v_and_b32 v1, 15, v0"); e("v_lshl_add_u32 v2, v1, 4, v2")
        e("s_mul_i32 s52, s32, 163840"); e("s_lshl_b32 s57, s33, 8"); e("s_add_u32 s52, s52, s57")
        s.dma(32, 2, 40, 52, 4*1280, L_WO, nt=True)
        e("s_branch L_hb2")
        s.lab("L_hffn")
        e("s_cmp_eq_u32 s31, 7"); e("s_cbranch_scc1 L_hdown")
        e("s_cmp_eq_u32 s31, 5"); e("s_cselect_b32 s40, s16, s18"); e("s_cselect_b32 s41, s17, s19")
        e(f"s_mov_b32 s53, {L_UP}"); e(f"s_cselect_b32 s53, {L_GATE}, s53")
        e("s_and_b32 s41, s41, 0xffff"); e(f"s_mov_b32 s42, {640*1728*2}"); e("s_mov_b32 s43, 0x20000")
        e("v_lshrrev_b32 v1, 2, v0"); e("v_mul_u32_u24 v2, 3456, v1"); e("v_and_b32 v1, 3, v0"); e("v_lshl_add_u32 v2, v1, 4, v2")
        e("s_lshl_b32 s52, s35, 6")
        for i in range(40):
            e("s_mov_b32 m0, s53")
            e("s_nop 0")
            e("buffer_load_dwordx4 v2, s[40:43], s52 offen" + " nt" + " lds")
            e("s_add_u32 s53, s53, 1024"); e(f"s_add_u32 s52, s52, {16*3456}")
        e("s_cmp_eq_u32 s31, 5"); e("s_cbranch_scc1 L_h4f")
        e("s_branch L_hb2")
        s.lab("L_hdown")
        s.srd(40, 20, 1728*640*2)
        e("v_lshlrev_b32 v2, 4, v0"); e("s_mul_i32 s52, s35, 40960")
        s.dma(40, 2, 40, 52, 1024, L_DOWN, nt=True)
        e("s_branch L_hb2")
        s.lab("L_h4")
        e("s_cmp_eq_u32 s34, 1"); e("s_cbranch_scc1 L_h4f")
        e("s_cmp_eq_u32 s34, 2"); e("s_cbranch_scc0 L_hb2")
        s.srd(48, 4, 2560)
        e("v_and_b32 v1, 15, v0"); e("v_lshlrev_b32 v9, 3, v1"); e("v_lshlrev_b32 v8, 1, v1")
        e("v_bfe_u32 v6, v0, 4, 1"); e("v_mul_u32_u24 v7, 1280, v6"); e("v_add_u32 v8, v8, v7"); e("v_lshlrev_b32 v6, 4, v6")
        e("s_lshl_b32 s57, s35, 5")
        e("buffer_load_ushort v204, v8, s[48:51], s57 offen")
        e("s_lshl_b32 s57, s35, 7"); e(f"s_add_u32 s58, s57, {W_MOD + 1280*8}"); e(f"s_add_u32 s57, s57, {W_MOD + 3200*8}")
        s.poll([(200, 9, "s58", 0), (202, 9, "s57", 0)], 10, wide=2)
        e("v_lshlrev_b32 v204, 16, v204")
        for r in (200, 202): e(f"v_lshrrev_b32 v{r}, v6, v{r}"); e(f"v_lshlrev_b32 v{r}, 16, v{r}")
        e("s_branch L_hb2")
        s.lab("L_h4f")
        e("v_lshlrev_b32 v9, 4, v0")
        for j in range(5): e(f"s_mov_b32 s{68+j}, {W_MOD + 1920*8 + j*1024}")
        for j in range(5): e(f"s_mov_b32 s{74+j}, {W_MOD + 2560*8 + j*1024}")
        loads = [(160+4*j, 9, f"s{68+j}", 0) for j in range(5)] + [(180+4*j, 9, f"s{74+j}", 0) for j in range(5)]
        s.poll(loads[9:], 10); s.poll(loads, 10)
        e("s_mov_b32 s57, 0x01000c0c"); e("s_cmp_eq_u32 s31, 5"); e("s_cselect_b32 s57, 0x03020c0c, s57")
        for j in range(5):
            for q in range(2):
                e(f"v_perm_b32 v{128+2*j+q}, v{160+4*j+2*q}, v{160+4*j+2*q}, s57")
                e(f"v_perm_b32 v{140+2*j+q}, v{180+4*j+2*q}, v{180+4*j+2*q}, s57")
                e(f"v_add_f32 v{140+2*j+q}, 1.0, v{140+2*j+q}")
            s.rnd2(140+2*j, 141+2*j, 10)
        s.lab("L_hb2")
        e("s_waitcnt vmcnt(0) lgkmcnt(0)")
        e("s_barrier")

    def swap(s, n, a, b):
        s.e("s_nop 1"); s.e(f"v_permlane{n}_swap_b32 v{a}, v{b}"); s.e("s_nop 1")
    def rnd1(s, a, t):
        s.e(f"v_cvt_pk_bf16_f32 v{t}, v{a}, v{a}"); s.e(f"v_lshlrev_b32 v{a}, 16, v{t}")
    def lanes32(s): s.e("s_mov_b32 exec_lo, -1"); s.e("s_mov_b32 exec_hi, 0")
    def tail(s):
        e = s.e
        L_GU2 = L_ST; L_AC2 = L_ST + 2048
        s.stamp(3)
        e("s_cmp_lt_u32 s31, 2"); e("s_cbranch_scc0 L_t1d")
        e("s_mov_b32 s57, s31")
        s.combine(L_ST, 4)
        e(f"v_max_f32 v20, {hex(f2u(1e-30))}, v19"); e("v_rcp_f32 v20, v20")
        e("v_lshrrev_b32 v1, 3, v0"); e("v_lshlrev_b32 v1, 10, v1"); e("v_and_b32 v2, 7, v0"); e("v_lshl_add_u32 v1, v2, 3, v1")
        e("v_mul_f32 v16, v16, v20"); e("v_mul_f32 v17, v17, v20"); e("v_cvt_pk_bf16_f32 v4, v16, v17"); e("v_mov_b32 v5, s30")
        e("s_lshl_b32 s58, s33, 1"); e("s_add_u32 s58, s58, s31")
        e("s_lshl_b32 s57, s32, 13"); e("s_lshl_b32 s59, s58, 6"); e("s_add_u32 s57, s57, s59"); e(f"s_add_u32 s57, s57, {W_PA}")
        e("buffer_store_dwordx2 v[4:5], v1, s[36:39], s57 offen sc1")
        e("s_lshl_b32 s57, s32, 8"); e("s_lshl_b32 s59, s58, 4"); e("s_add_u32 s57, s57, s59"); e(f"s_add_u32 s57, s57, {W_PM}")
        e("v_mov_b32 v8, v18"); e("v_mov_b32 v9, s30"); e("v_mov_b32 v10, v19"); e("v_mov_b32 v11, s30")
        e("s_mov_b64 exec, 1"); e("buffer_store_dwordx4 v[8:11], v1, s[36:39], s57 offen sc1"); s.allx()
        s.lab("L_t1d")
        e("s_cmp_eq_u32 s34, 0"); e("s_cbranch_scc1 L_t2")
        e("s_cmp_eq_u32 s34, 1"); e("s_cbranch_scc1 L_t4")
        e("s_cmp_eq_u32 s34, 2"); e("s_cbranch_scc0 L_fin")
        e("s_cmp_eq_u32 s31, 4"); e("s_cbranch_scc0 L_fin")
        e("v_lshlrev_b32 v9, 3, v0"); e("v_lshlrev_b32 v8, 4, v0")
        e("v_bfe_u32 v6, v0, 4, 1"); e("v_and_b32 v1, 15, v0")
        e("v_mul_u32_u24 v11, 2560, v6"); e("v_lshrrev_b32 v7, 1, v1"); e("v_lshl_add_u32 v11, v7, 3, v11")
        e("v_mul_u32_u24 v13, 1280, v6"); e("v_lshl_add_u32 v13, v1, 1, v13")
        e("v_mov_b32 v5, s30")
        s.srd(48, 26, 2560)
        e("s_lshl_b32 s59, s35, 6"); e(f"s_add_u32 s59, s59, {W_X1}")
        e("s_mul_i32 s66, s35, 14336"); e(f"s_add_u32 s66, s66, {W_D}")
        for q in range(1, 4): e(f"s_add_u32 s{66+q}, s66, {4096*q}")
        e("s_lshl_b32 s70, s35, 5")
        e("v_mov_b32 v148, 0"); e("v_mov_b32 v149, 0"); e("v_mov_b32 v150, s30")
        e("s_lshl_b32 s57, s35, 13"); e(f"s_add_u32 s57, s57, {W_Y}"); e("s_add_u32 s58, s57, 4096")
        def c3(g):
            b = 32 + 32*g
            e(f"v_add_f32 v16, v{b}, v{b+2}"); e(f"v_add_f32 v17, v{b+4}, v{b+6}")
            for i in range(4, 16, 2): e(f"v_add_f32 v16, v16, v{b+2*i}"); e(f"v_add_f32 v17, v17, v{b+2+2*i}")
        s.ppoll([[(32+32*g+2*i, 9, "s57" if i < 8 else "s58", (i % 8)*512, 2) for i in range(16)] for g in range(s.o.get("g3", 1))], 14, c3)
        s.stamp(4)
        e("v_add_f32 v16, v16, v17"); e("s_nop 0"); e("v_mov_b32 v17, v16")
        s.swap(32, 16, 17); e("v_add_f32 v16, v16, v17")
        s.rnd1(16, 18); e("v_mul_f32 v16, v16, v200"); s.rnd1(16, 18)
        e("v_add_f32 v204, v204, v16"); s.rnd1(204, 18)
        e("s_nop 1"); e("v_mov_b32_dpp v18, v204 quad_perm:[1,0,3,2] row_mask:0xf bank_mask:0xf")
        e("v_cvt_pk_bf16_f32 v4, v204, v18")
        e("s_mov_b32 exec_lo, 0x55555555"); e("s_mov_b32 exec_hi, 0")
        e("buffer_store_dwordx2 v[4:5], v11, s[36:39], s59 offen sc1"); s.allx()
        s.stamp(5)
        def c5(g):
            b = 96 + 56*g if g == 0 else 20
            b = (96, 206)[g] if False else (96, 20)[g]
            e(f"v_add_f32 v16, v{b}, v{b+4}"); e(f"v_add_f32 v17, v{b+1}, v{b+5}")
            for i in range(2, 14): e(f"v_add_f32 v16, v16, v{b+4*i}"); e(f"v_add_f32 v17, v17, v{b+1+4*i}")
        e("s_waitcnt vmcnt(0)")
        e("v_mov_b32 v72, 0"); e("v_mov_b32 v73, 0"); e("v_mov_b32 v74, s30")
        s.ppoll([[((96, 20)[g]+4*i, 8, f"s{66 + i//4}", (i % 4)*1024, 3) for i in range(14)] for g in range(s.o.get("g5", 1))], 14, c5, execs={13: 1})
        s.stamp(6)
        s.swap(16, 16, 17); e("v_add_f32 v16, v16, v17"); e("s_nop 0"); e("v_mov_b32 v17, v16")
        s.swap(32, 16, 17); e("v_add_f32 v16, v16, v17")
        s.rnd1(16, 18); e("v_mul_f32 v16, v16, v202"); s.rnd1(16, 18)
        e("v_add_f32 v16, v204, v16"); e("v_cvt_pk_bf16_f32 v4, v16, v16")
        s.lanes32(); e("buffer_store_short v4, v13, s[48:51], s70 offen"); s.allx()
        e("s_cmp_eq_u32 s35, 0"); e("s_cbranch_scc0 L_fin")
        e("v_mov_b32 v1, 0"); e("v_mov_b32 v4, s30"); e("s_mov_b64 exec, 1")
        e("buffer_store_dword v4, v1, s[36:39], 0 offen sc1"); s.allx()
        e("s_branch L_fin")
        s.lab("L_t2")
        e("s_lshl_b32 s57, s31, 5"); e(f"s_add_u32 s57, s57, {L_WO}")
        s.gemv_addr(2, 3, 0, 0, "s57", 256, 1)
        for st in range(4):
            e(f"ds_read_b64_tr_b16 v[{40+4*st}:{41+4*st}], v3 offset:{st*8192}")
            e(f"ds_read_b64_tr_b16 v[{42+4*st}:{43+4*st}], v3 offset:{st*8192 + 1024}")
        e("v_and_b32 v1, 15, v0"); e("v_mul_u32_u24 v2, 272, v1"); e("v_lshrrev_b32 v7, 4, v0"); e("v_lshl_add_u32 v2, v7, 4, v2")
        e("v_lshlrev_b32 v7, 4, v7"); e(f"v_add_u32 v7, {L_W2}, v7")
        e("v_lshlrev_b32 v8, 4, v1"); e("v_lshlrev_b32 v10, 2, v1"); e(f"v_add_u32 v10, {L_W2}, v10")
        e("v_lshrrev_b32 v6, 2, v0"); e("v_mul_u32_u24 v6, 272, v6"); e("v_and_b32 v1, 3, v0"); e("v_lshl_add_u32 v6, v1, 3, v6")
        e("s_lshl_b32 s57, s31, 5"); e("v_add_u32 v6, s57, v6")
        e("v_lshlrev_b32 v9, 4, v0"); e("v_lshlrev_b32 v11, 3, v0"); e("v_mov_b32 v5, s30")
        e("s_lshl_b32 s59, s33, 3"); e("s_add_u32 s59, s59, s31"); e("s_lshl_b32 s59, s59, 13")
        e("s_lshl_b32 s58, s32, 8"); e("s_add_u32 s59, s59, s58"); e(f"s_add_u32 s59, s59, {W_Y}")
        e(f"s_add_u32 s58, s58, {W_PM}")
        e("s_lshl_b32 s57, s32, 13"); e("s_lshl_b32 s66, s31, 10"); e("s_add_u32 s57, s57, s66"); e(f"s_add_u32 s57, s57, {W_PA}")
        e("s_cmp_eq_u32 s31, 7"); e("s_cbranch_scc1 L_t2w")
        s.ppoll([[(76+4*g, 9, "s57", 0, 4)] for g in range(s.o.get("g2", 1))], 14, lambda g: e(f"ds_write2_b32 v6, v{76+4*g}, v{78+4*g} offset0:0 offset1:1"))
        e("s_branch L_t2b")
        s.lab("L_t2w")
        def c2(g):
            e(f"ds_write2_b32 v6, v{76+8*g}, v{78+8*g} offset0:0 offset1:1"); e(f"v_mov_b32 v36, v{80+8*g}"); e(f"v_mov_b32 v38, v{82+8*g}")
        s.ppoll([[(76+8*g, 9, "s57", 0, 4), (80+8*g, 8, "s58", 0, 4)] for g in range(s.o.get("g2", 1))], 14, c2)
        e("s_nop 1")
        D = "row_mask:0xf bank_mask:0xf"
        e(f"v_max_f32_dpp v20, v36, v36 row_ror:2 {D}")
        for r in (4, 8): e("s_nop 1"); e(f"v_max_f32_dpp v20, v20, v20 row_ror:{r} {D}")
        e(f"s_mov_b32 s55, {hex(C_SM)}")
        e("v_sub_f32 v21, v36, v20"); e("v_mul_f32 v21, s55, v21"); e("v_exp_f32 v21, v21"); e("s_nop 0"); e("v_mul_f32 v21, v21, v38")
        e("s_nop 1"); e(f"v_add_f32_dpp v22, v21, v21 row_ror:2 {D}")
        for r in (4, 8): e("s_nop 1"); e(f"v_add_f32_dpp v22, v22, v22 row_ror:{r} {D}")
        e("v_rcp_f32 v22, v22"); e("s_nop 0"); e("v_mul_f32 v21, v21, v22")
        s.lanes16(); e("ds_write_b32 v10, v21"); s.allx()
        s.lab("L_t2b")
        e("s_waitcnt lgkmcnt(0)"); e("s_barrier")
        s.stamp(4)
        for st in range(4): e(f"ds_read_b128 v[{56+4*st}:{59+4*st}], v2 offset:{st*64}")
        e("ds_read_b128 v[72:75], v7")
        for st in range(4):
            e(f"s_waitcnt lgkmcnt({4-st})")
            e(f"v_mfma_f32_16x16x32_bf16 v[12:15], v[{56+4*st}:{59+4*st}], v[{40+4*st}:{43+4*st}], " + ("0" if st == 0 else "v[12:15]"))
        e("s_waitcnt lgkmcnt(0)"); e("s_nop 7")
        e("v_mul_f32 v16, v12, v72"); e("v_mul_f32 v17, v13, v73"); e("v_fma_f32 v16, v14, v74, v16"); e("v_fma_f32 v17, v15, v75, v17")
        s.swap(16, 16, 17); e("v_add_f32 v16, v16, v17"); e("s_nop 0"); e("v_mov_b32 v17, v16")
        s.swap(32, 16, 17); e("v_add_f32 v4, v16, v17")
        s.lanes32(); e("buffer_store_dwordx2 v[4:5], v11, s[36:39], s59 offen sc1"); s.allx()
        s.stamp(5)
        e("s_branch L_fin")
        s.lab("L_t4")
        e(f"s_mov_b32 s57, {L_GATE}"); e("s_bitcmp1_b32 s31, 2"); e(f"s_cselect_b32 s57, {L_UP}, s57")
        e("s_and_b32 s66, s31, 3"); e("s_mul_i32 s58, s66, 10240"); e("s_add_u32 s57, s57, s58")
        s.gemv_addr(2, 3, L_H, HROW, "s57", 64, 1)
        for st in range(5):
            for t in range(2):
                r = 64 + (st*2+t)*4
                e(f"ds_read_b64_tr_b16 v[{r}:{r+1}], v3 offset:{st*2048 + t*32}")
                e(f"ds_read_b64_tr_b16 v[{r+2}:{r+3}], v3 offset:{st*2048 + t*32 + 256}")
        e("s_mul_i32 s58, s66, 320"); e("v_add_u32 v2, s58, v2")
        e("s_waitcnt lgkmcnt(0)")
        e("s_mul_i32 s57, s31, 160"); e(f"s_add_u32 s57, s57, {L_DOWN}")
        e("s_lshl_b32 s58, s31, 7"); e(f"s_add_u32 s58, s58, {L_AC2}")
        s.gemv_addr(6, 7, 0, 64, "s57", 1280, 1)
        e("v_add_u32 v6, s58, v6")
        for q in range(5):
            e(f"ds_read_b64_tr_b16 v[{104+4*q}:{105+4*q}], v7 offset:{q*32}")
            e(f"ds_read_b64_tr_b16 v[{106+4*q}:{107+4*q}], v7 offset:{q*32 + 5120}")
        e("v_and_b32 v1, 15, v0"); e("v_lshlrev_b32 v8, 4, v1")
        e("s_lshl_b32 s57, s31, 8"); e(f"s_add_u32 s57, s57, {L_GU2}"); e("v_lshlrev_b32 v10, 3, v1"); e("v_add_u32 v10, s57, v10")
        e("v_lshrrev_b32 v7, 5, v0"); e("v_and_b32 v1, 31, v0")
        e("v_lshlrev_b32 v11, 3, v1"); e("v_lshl_add_u32 v11, v7, 2, v11"); e(f"v_add_u32 v11, {L_GU2}, v11")
        e("v_lshlrev_b32 v7, 6, v7"); e("v_lshl_add_u32 v7, v1, 1, v7"); e("v_add_u32 v7, s58, v7")
        e("s_mul_i32 s66, s31, 5"); e("s_mul_i32 s66, s66, 14336"); e("s_lshl_b32 s57, s35, 8"); e("s_add_u32 s66, s66, s57"); e(f"s_add_u32 s66, s66, {W_D}")
        for q in range(1, 5): e(f"s_add_u32 s{66+q}, s66, {14336*q}")
        e("s_waitcnt lgkmcnt(0)")
        e("s_sub_u32 s57, s31, 4"); e("s_cmp_lt_u32 s57, 2"); e("s_cbranch_scc0 L_t4a")
        e("s_mul_i32 s58, s57, 2560"); e(f"s_add_u32 s58, s58, {W_X1}")
        e(f"s_mul_i32 s57, s57, {HROW}"); e(f"s_add_u32 s57, s57, {L_H}")
        e("v_lshlrev_b32 v9, 3, v0"); e("v_lshlrev_b32 v28, 2, v0"); e("v_add_u32 v28, s57, v28")
        e(f"v_mov_b32 v61, {hex(f2u(1/640))}")
        def c4(g):
            for j in range(5): s.unpack(44+2*j, 45+2*j, 150+10*g+2*j)
        s.ppoll([[(150+10*g+2*j, 9, "s58", j*512, 2) for j in range(5)] for g in range(s.o.get("g4", 1))], 14, c4)
        s.stamp(4)
        e("v_pk_add_f32 v[56:57], v[44:45], v[46:47]"); e("v_pk_mul_f32 v[58:59], v[44:45], v[44:45]")
        e("v_pk_fma_f32 v[58:59], v[46:47], v[46:47], v[58:59]")
        for j in range(2, 5):
            p = f"v[{44+2*j}:{45+2*j}]"
            e(f"v_pk_add_f32 v[56:57], v[56:57], {p}"); e(f"v_pk_fma_f32 v[58:59], {p}, {p}, v[58:59]")
        e("v_add_f32 v56, v56, v57"); e("v_add_f32 v58, v58, v59"); e("s_nop 0")
        e(f"v_add_f32_dpp v57, v56, v56 row_ror:8 {D}"); e(f"v_add_f32_dpp v59, v58, v58 row_ror:8 {D}")
        for m in ("row_ror:4 row_mask:0xf", "row_ror:2 row_mask:0xf", "row_ror:1 row_mask:0xf", "row_bcast:15 row_mask:0xa", "row_bcast:31 row_mask:0xc"):
            e("s_nop 0"); e(f"v_add_f32_dpp v57, v57, v57 {m} bank_mask:0xf"); e(f"v_add_f32_dpp v59, v59, v59 {m} bank_mask:0xf")
        e("s_nop 0"); e("v_readlane_b32 s57, v57, 63"); e("v_readlane_b32 s58, v59, 63"); e("s_nop 1")
        e("v_mul_f32 v60, s57, v61"); e("v_mul_f32 v62, s58, v61")
        e("v_fma_f32 v62, -v60, v60, v62"); e("v_max_f32 v62, 0, v62")
        s.rnd2(60, 62, 29)
        e(f"v_add_f32 v62, {hex(f2u(1e-5))}, v62"); s.rnd1(62, 29)
        e("v_sqrt_f32 v62, v62"); e("s_nop 0"); s.rnd1(62, 29)
        e("v_rcp_f32 v62, v62")
        for j in range(5):
            a = 44+2*j; p = f"v[{a}:{a+1}]"
            e(f"v_pk_add_f32 {p}, {p}, v[60:61] op_sel_hi:[1,0] neg_lo:[0,1] neg_hi:[0,1]"); s.rnd2(a, a+1, 29+(j & 1))
        for j in range(5):
            a = 44+2*j; p = f"v[{a}:{a+1}]"
            e(f"v_pk_mul_f32 {p}, {p}, v[62:63] op_sel_hi:[1,0]"); s.rnd2(a, a+1, 29)
            e(f"v_pk_mul_f32 {p}, {p}, v[{140+2*j}:{141+2*j}]"); s.rnd2(a, a+1, 29)
            e(f"v_pk_add_f32 {p}, {p}, v[{128+2*j}:{129+2*j}]")
            e(f"v_cvt_pk_bf16_f32 v{32+j}, v{a}, v{a+1}")
            e(f"ds_write_b32 v28, v{32+j} offset:{j*256}")
        e("s_waitcnt lgkmcnt(0)")
        s.lab("L_t4a")
        e("s_barrier")
        for st in range(5): e(f"ds_read_b128 v[{32+4*st}:{35+4*st}], v2 offset:{st*64}")
        for st in range(5):
            e(f"s_waitcnt lgkmcnt({4-st})")
            for t in range(2):
                r = 64 + (st*2+t)*4; acc = 12+4*t
                e(f"v_mfma_f32_16x16x32_bf16 v[{acc}:{acc+3}], v[{32+4*st}:{35+4*st}], v[{r}:{r+3}], " + ("0" if st == 0 else f"v[{acc}:{acc+3}]"))
        e("s_nop 7")
        s.lanes16(); e("ds_write_b64 v10, v[12:13]"); e("ds_write_b64 v10, v[16:17] offset:128"); s.allx()
        e("s_waitcnt lgkmcnt(0)"); e("s_barrier")
        for q in range(4): e(f"ds_read2st64_b32 v[{20+2*q}:{21+2*q}], v11 offset0:{2*q} offset1:{2*q+1}")
        e("s_waitcnt lgkmcnt(2)")
        e("v_add_f32 v16, v20, v21"); e("v_add_f32 v18, v22, v23"); e("v_add_f32 v16, v16, v18")
        e("s_waitcnt lgkmcnt(0)")
        e("v_add_f32 v17, v24, v25"); e("v_add_f32 v18, v26, v27"); e("v_add_f32 v17, v17, v18")
        s.rnd2(16, 17, 18)
        s.silu(16, 18); s.rnd1(16, 18)
        e("v_mul_f32 v16, v16, v17"); e("v_cvt_pk_bf16_f32 v16, v16, v16")
        e("ds_write_b16 v7, v16"); e("s_waitcnt lgkmcnt(0)")
        e("ds_read_b128 v[28:31], v6"); e("s_waitcnt lgkmcnt(0)")
        s.stamp(5)
        for q in range(5): e(f"v_mfma_f32_16x16x32_bf16 v[{32+4*q}:{35+4*q}], v[28:31], v[{104+4*q}:{107+4*q}], 0")
        e("s_nop 4")
        for q in range(5): e(f"v_mov_b32 v{34+4*q}, s30")
        s.lanes16()
        for q in range(5): e(f"buffer_store_dwordx3 v[{32+4*q}:{34+4*q}], v8, s[36:39], s{66+q} offen sc1")
        s.allx()
        s.stamp(6)
        s.lab("L_fin")
        if max(s.o.get(k, 1) for k in ("g2", "g3", "g4", "g5")) > 1: e("s_waitcnt vmcnt(0)")

    def gen(s):
        e = s.e
        s.L.append(f"; @launch grid=(256,1,1) block=(512,1,1) lds={LDS}")
        s.L.append('.amdgcn_target "amdgcn-amd-amdhsa--gfx950"')
        s.L += [".text", f".globl {KN}", ".p2align 8", f".type {KN},@function", f"{KN}:"]
        e("s_cmp_ge_u32 s2, 256"); e("s_cbranch_scc1 L_end")
        e("s_load_dwordx16 s[4:19], s[0:1], 0"); e("s_load_dwordx8 s[20:27], s[0:1], 64"); e("s_load_dwordx2 s[28:29], s[0:1], 104")
        e("v_lshrrev_b32 v1, 6, v0"); e("v_and_b32 v0, 63, v0"); e("v_readfirstlane_b32 s31, v1")
        e("s_lshr_b32 s32, s2, 3"); e("s_and_b32 s33, s2, 7")
        s.roles()
        e("s_xor_b32 s95, s32, s33"); e("s_and_b32 s95, s95, 1"); e("s_xor_b32 s95, s95, 1")
        e("s_lshr_b32 s96, s33, 1"); e("s_lshl_b32 s57, s32, 2"); e("s_add_u32 s96, s96, s57")
        s.stamp_fill(0)
        e("s_waitcnt lgkmcnt(0)")
        e("s_load_dword s30, s[28:29], 0")
        s.srd(36, 28, W_SIZE)
        e("s_cmp_ge_u32 s31, 4"); e("s_cbranch_scc1 L_help")
        s.streamer()
        e("s_branch L_tail")
        s.lab("L_help")
        s.helpers()
        s.lab("L_tail")
        s.tail()
        if s.stamps:
            s.stamp(7)
            e(f"s_cmp_eq_u32 s31, {s.sw}"); e("s_cbranch_scc0 L_end")
            s.stamp_write()
        s.lab("L_end"); e("s_endpgm")
        s.L += ['.section .rodata,"a"', ".p2align 6", f".amdhsa_kernel {KN}", "  .amdhsa_next_free_vgpr 256", "  .amdhsa_next_free_sgpr 102",
                "  .amdhsa_accum_offset 256", "  .amdhsa_group_segment_fixed_size 0", "  .amdhsa_kernarg_size 112", "  .amdhsa_user_sgpr_count 2",
                "  .amdhsa_user_sgpr_kernarg_segment_ptr 1", "  .amdhsa_system_sgpr_workgroup_id_x 1", ".end_amdhsa_kernel"]
        return "\n".join(s.L) + "\n"

if __name__ == "__main__":
    kw = {}
    for a in sys.argv[2:]:
        k, v = a.split("="); kw[k] = None if v == "None" else int(v)
    open(sys.argv[1], "w").write(K(**kw).gen())
```

```python
KN = "adaLN_cond__mha_block_cached__swiglu_ffn__decode_kernel"
CEXP = 0x3e0293ee
import struct, math
def f2u(x): return struct.unpack("<I", struct.pack("<f", x))[0]
C_SM = f2u(128 ** -0.5 * math.log2(math.e))
LOG2E = f2u(math.log2(math.e))
NEG = f2u(-1e30)
TAGC = 0x9E3779B9
W_CNT, W_MOD, W_Q, W_X1, W_PART, W_Y, W_D = 0x10000, 0x60000, 0x68000, 0x70000, 0x80000, 0x110000, 0x160000
W_MODP, W_QP = 0x1F0000, 0x208000
W_SIZE = 0x250000
W_PA, W_PM = 0x80000, 0xC0000
L_WQ = 0; L_MODS = 40960; L_MOD2 = 40960; L_WO = 61440
L_GATE = 20480; L_UP = 61440; L_DOWN = 102400
L_ACT = 143360; L_H = L_ACT + 2560; L_Q = L_H + 2560; L_ST = L_Q + 512; L_OH = L_ST + 4352; L_GU = L_OH + 512; L_AC = L_GU + 1024
L_END = L_AC + 128
L_ST2 = 0
L_A2 = 0; L_W2 = 4608; HROW = 1344
L_ACTA = L_OH
LDS = 159744
assert L_END <= LDS
SPIN = 60000

class G:
    def __init__(s, NB=3, PACE=8, stamps=False, mode="full", sw=4, late=0, **kw):
        s.L = []; s.NB = NB; s.PACE = PACE; s.stamps = stamps; s.mode = mode; s.n = 0; s.sw = sw; s.late = late; s.o = kw
    def e(s, x): s.L.append("  " + x)
    def lab(s, x): s.L.append(x + ":")
    def uniq(s, p): s.n += 1; return f"{p}_{s.n}"
    def srd(s, d, p, size):
        s.e(f"s_mov_b32 s{d}, s{p}"); s.e(f"s_and_b32 s{d+1}, s{p+1}, 0xffff")
        s.e(f"s_mov_b32 s{d+2}, {hex(size)}"); s.e(f"s_mov_b32 s{d+3}, 0x20000")
    def stamp(s, k):
        if s.stamps:
            s.e("s_memrealtime s[90:91]"); s.e("s_waitcnt lgkmcnt(0)"); s.e(f"s_mov_b32 s{80+k}, s90")
    def stamp_fill(s, k):
        if s.stamps:
            s.e("s_memrealtime s[90:91]"); s.e("s_waitcnt lgkmcnt(0)")
            for j in range(k, 8): s.e(f"s_mov_b32 s{80+j}, s90")
    def stamp_write(s):
        if s.stamps and s.o.get("dbg"):
            e = s.e
            e("s_cmp_eq_u32 s2, 7"); e("s_cbranch_scc1 L_dbgw0"); e("s_cmp_eq_u32 s2, 5"); e("s_cbranch_scc0 L_dbgx")
            e("s_load_dwordx2 s[92:93], s[0:1], 96"); e("s_waitcnt lgkmcnt(0)"); e("s_add_u32 s92, s92, 32"); e("s_addc_u32 s93, s93, 0"); e("s_branch L_dbgw1")
            s.lab("L_dbgw0")
            e("s_load_dwordx2 s[92:93], s[0:1], 96"); e("s_waitcnt lgkmcnt(0)")
            s.lab("L_dbgw1")
            e("v_mov_b32 v250, 0"); e("s_mov_b64 exec, 1")
            for j in range(0, 8, 2):
                e(f"v_mov_b32 v252, s{80+j}"); e(f"v_mov_b32 v253, s{81+j}")
                e(f"global_store_dwordx2 v250, v[252:253], s[92:93] offset:{j*4}"); e("s_nop 1")
            e("s_mov_b64 exec, -1")
            s.lab("L_dbgx")
        elif s.stamps:
            s.e("s_add_u32 s92, s28, 0x10000000"); s.e("s_addc_u32 s93, s29, 0")
            s.e("s_lshl_b32 s94, s2, 5"); s.e("v_mov_b32 v250, s94")
            s.e("s_mov_b64 exec, 1")
            for j in range(0, 8, 2):
                s.e(f"v_mov_b32 v252, s{80+j}"); s.e(f"v_mov_b32 v253, s{81+j}")
                s.e(f"global_store_dwordx2 v250, v[252:253], s[92:93] offset:{j*4}")
                s.e("s_nop 1")
            s.e("s_mov_b64 exec, -1")
    def wred(s, op, t, src):
        e = s.e
        e("s_nop 1")
        e(f"{op}_dpp v{t}, v{src}, v{src} row_ror:8 row_mask:0xf bank_mask:0xf")
        for r in (4, 2, 1):
            e("s_nop 1"); e(f"{op}_dpp v{t}, v{t}, v{t} row_ror:{r} row_mask:0xf bank_mask:0xf")
        e("s_nop 1"); e(f"{op}_dpp v{t}, v{t}, v{t} row_bcast:15 row_mask:0xa bank_mask:0xf")
        e("s_nop 1"); e(f"{op}_dpp v{t}, v{t}, v{t} row_bcast:31 row_mask:0xc bank_mask:0xf")
    def poll(s, loads, t0, wide=4, pre=None, execs=None, xloads=(), xtags=()):
        e = s.e
        lp = s.uniq("L_poll"); dn = s.uniq("L_polld")
        e(f"s_mov_b32 s56, {SPIN}")
        s.lab(lp)
        for k, (d, vo, so, imm) in enumerate(loads):
            if execs and execs.get(k): e("s_mov_b32 exec_lo, -1"); e("s_mov_b32 exec_hi, 0")
            off = f" offset:{imm}" if imm else ""
            e(f"buffer_load_dwordx{wide} v[{d}:{d+wide-1}], v{vo}, s[36:39], {so} offen{off} sc1")
            if execs and execs.get(k): e("s_mov_b64 exec, -1")
        for x in xloads: e(x)
        e("s_waitcnt vmcnt(0)")
        tags = [d+q for (d, vo, so, imm) in loads for q in ([2] if wide == 3 else range(1, wide, 2))] + list(xtags)
        if len(tags) <= 2:
            e(f"v_xor_b32 v{t0}, s30, v{tags[0]}")
            if len(tags) == 2: e(f"v_xor_b32 v{t0+1}, s30, v{tags[1]}"); e(f"v_or_b32 v{t0}, v{t0}, v{t0+1}")
        else:
            e(f"v_max3_u32 v{t0}, s30, v{tags[0]}, v{tags[1]}"); e(f"v_min3_u32 v{t0+1}, s30, v{tags[0]}, v{tags[1]}")
            r = tags[2:]
            while r:
                a = r[0]; b = r[1] if len(r) > 1 else r[0]; r = r[2:]
                e(f"v_max3_u32 v{t0}, v{t0}, v{a}, v{b}"); e(f"v_min3_u32 v{t0+1}, v{t0+1}, v{a}, v{b}")
            e(f"v_xor_b32 v{t0}, v{t0}, v{t0+1}")
        e(f"v_cmp_ne_u32 vcc, 0, v{t0}")
        e("s_sub_u32 s56, s56, 1")
        e("s_cmp_eq_u32 s56, 0"); e(f"s_cbranch_scc1 {dn}")
        e("s_and_b64 vcc, exec, vcc")
        e(f"s_cbranch_vccnz {lp}")
        s.lab(dn)
    def ppoll(s, gens, t0, consume, execs=None):
        e = s.e; G = len(gens); n = len(gens[0])
        lp = s.uniq("L_pp"); jn = s.uniq("L_ppj")
        def issue(g):
            for k, (d, vo, so, imm, wide) in enumerate(gens[g]):
                if execs and execs.get(k): e("s_mov_b32 exec_hi, 0")
                off = f" offset:{imm}" if imm else ""
                e(f"buffer_load_dwordx{wide} v[{d}:{d+wide-1}], v{vo}, s[36:39], {so} offen{off} sc1")
                if execs and execs.get(k): e("s_mov_b64 exec, -1")
        for g in range(G): issue(g)
        e(f"s_mov_b32 s56, {SPIN}")
        s.lab(lp)
        for g in range(G):
            e(f"s_waitcnt vmcnt({n*(G-1)})")
            tags = [d+q for (d, vo, so, imm, wide) in gens[g] for q in ([2] if wide == 3 else range(1, wide, 2))]
            if len(tags) == 1:
                e(f"v_cmp_ne_u32 vcc, s30, v{tags[0]}")
            elif len(tags) == 2:
                e(f"v_xor_b32 v{t0}, s30, v{tags[0]}"); e(f"v_xor_b32 v{t0+1}, s30, v{tags[1]}"); e(f"v_or_b32 v{t0}, v{t0}, v{t0+1}")
                e(f"v_cmp_ne_u32 vcc, 0, v{t0}")
            else:
                e(f"v_max3_u32 v{t0}, s30, v{tags[0]}, v{tags[1]}"); e(f"v_min3_u32 v{t0+1}, s30, v{tags[0]}, v{tags[1]}")
                r = tags[2:]
                while r:
                    a = r[0]; b = r[1] if len(r) > 1 else r[0]; r = r[2:]
                    e(f"v_max3_u32 v{t0}, v{t0}, v{a}, v{b}"); e(f"v_min3_u32 v{t0+1}, v{t0+1}, v{a}, v{b}")
                e(f"v_cmp_ne_u32 vcc, v{t0}, v{t0+1}")
            e("s_nop 0"); e("s_and_b64 vcc, exec, vcc")
            e(f"s_cbranch_vccz {jn}_g{g}")
            issue(g)
        e("s_sub_u32 s56, s56, 1"); e("s_cmp_eq_u32 s56, 0"); e(f"s_cbranch_scc0 {lp}")
        e("s_waitcnt vmcnt(0)")
        for g in range(G):
            s.lab(f"{jn}_g{g}")
            consume(g)
            if g < G-1: e(f"s_branch {jn}")
        s.lab(jn)
    def dma(s, n, voff, srd, sreg, step, ldsbase, nt=False):
        e = s.e
        nt = True
        for i in range(n):
            e(f"s_mov_b32 m0, {ldsbase + i*1024}")
            if i: e(f"s_add_u32 s{sreg}, s{sreg}, {step}")
            else: e("s_nop 0")
            e(f"buffer_load_dwordx4 v{voff}, s[{srd}:{srd+3}], s{sreg} offen" + (" nt" if nt else "") + " lds")
    def gemv(s, acc, va, vb, RB, steps, r0, batch=10, astep=64, zero=True):
        e = s.e
        k = 0; first = zero
        while k < steps:
            nb = min(batch, steps - k)
            for j in range(nb):
                r = r0 + j*8; st = k + j
                e(f"ds_read_b128 v[{r}:{r+3}], v{va} offset:{st*astep}")
                e(f"ds_read_b64_tr_b16 v[{r+4}:{r+5}], v{vb} offset:{st*32*RB}")
                e(f"ds_read_b64_tr_b16 v[{r+6}:{r+7}], v{vb} offset:{st*32*RB + 4*RB}")
            e("s_waitcnt lgkmcnt(0)")
            for j in range(nb):
                r = r0 + j*8
                c = "0" if first else f"v[{acc}:{acc+3}]"; first = False
                e(f"v_mfma_f32_16x16x32_bf16 v[{acc}:{acc+3}], v[{r}:{r+3}], v[{r+4}:{r+7}], {c}")
            k += nb
        e("s_nop 7")
    def gemv4(s, acc, va, vb, RB, steps, r0):
        e = s.e
        for st in range(steps):
            r = r0 + st*20
            e(f"ds_read_b128 v[{r}:{r+3}], v{va} offset:{st*64}")
            for q in range(4):
                e(f"ds_read_b64_tr_b16 v[{r+4+4*q}:{r+5+4*q}], v{vb} offset:{st*32*RB + q*32}")
                e(f"ds_read_b64_tr_b16 v[{r+6+4*q}:{r+7+4*q}], v{vb} offset:{st*32*RB + 4*RB + q*32}")
        for st in range(steps):
            r = r0 + st*20
            e(f"s_waitcnt lgkmcnt({min(15, (steps-1-st)*9)})")
            for q in range(4):
                c = "0" if st == 0 else f"v[{acc+4*q}:{acc+4*q+3}]"
                e(f"v_mfma_f32_16x16x32_bf16 v[{acc+4*q}:{acc+4*q+3}], v[{r}:{r+3}], v[{r+4+4*q}:{r+7+4*q}], {c}")
        e("s_nop 7")
    def gemv_addr(s, va, vb, abase, arow, bbase, RB, t):
        e = s.e
        e(f"v_and_b32 v{t}, 1, v0"); e(f"v_mul_u32_u24 v{va}, {arow}, v{t}")
        e(f"v_lshrrev_b32 v{t}, 4, v0"); e(f"v_lshl_add_u32 v{va}, v{t}, 4, v{va}")
        e(f"v_add_u32 v{va}, {abase}, v{va}")
        e(f"v_lshlrev_b32 v{vb}, 3, v{t}")
        e(f"v_bfe_u32 v{t}, v0, 2, 2"); e(f"v_add_u32 v{vb}, v{vb}, v{t}")
        e(f"v_mul_u32_u24 v{vb}, {RB}, v{vb}")
        e(f"v_and_b32 v{t}, 3, v0"); e(f"v_lshl_add_u32 v{vb}, v{t}, 3, v{vb}")
        if isinstance(bbase, int): e(f"v_add_u32 v{vb}, {bbase}, v{vb}")
        else: e(f"v_add_u32 v{vb}, {bbase}, v{vb}")
    def unpack(s, lo, hi, src):
        s.e(f"v_and_b32 v{hi}, 0xffff0000, v{src}"); s.e(f"v_lshlrev_b32 v{lo}, 16, v{src}")
    def rnd2(s, a, b, t):
        s.e(f"v_cvt_pk_bf16_f32 v{t}, v{a}, v{b}"); s.unpack(a, b, t)

    def save_state(s, bexpr):
        e = s.e
        e("s_lshl_b32 s57, s31, 1"); e(f"s_add_u32 s57, s57, {bexpr}"); e("s_mul_i32 s57, s57, 544"); e(f"s_add_u32 s57, s57, {L_ST}")
        s.wred("v_add_f32", 14, 13)
        e("v_lshrrev_b32 v15, 4, v0"); e("v_lshlrev_b32 v15, 7, v15"); e("v_and_b32 v1, 15, v0"); e("v_lshl_add_u32 v15, v1, 2, v15")
        e("v_add_u32 v15, s57, v15")
        e("s_mov_b32 exec_lo, 0x00ff00ff"); e("s_mov_b32 exec_hi, 0x00ff00ff")
        for r in range(4): e(f"ds_write_b32 v15, v{16+r} offset:{r*32}")
        e("s_mov_b32 exec_lo, 0"); e("s_mov_b32 exec_hi, 0x80000000")
        e("v_mov_b32 v13, v14"); e("v_mov_b32 v15, s57")
        e("ds_write_b64 v15, v[12:13] offset:512")
        e("s_mov_b64 exec, -1")
    def init_state(s):
        e = s.e
        e(f"v_mov_b32 v12, {hex(NEG)}"); e("v_mov_b32 v13, 0")
        for r in range(4): e(f"v_mov_b32 v{16+r}, 0")
    def load_q(s, b):
        e = s.e
        e("v_bfe_u32 v14, v0, 2, 2"); e("v_lshrrev_b32 v15, 4, v0"); e("v_lshl_add_u32 v14, v15, 2, v14"); e("v_lshlrev_b32 v14, 4, v14")
        e(f"v_add_u32 v14, {L_Q + b*256}, v14")
        e(f"ds_read_b128 v[28:31], v14")
        e("v_and_b32 v15, 3, v0")
        e("s_waitcnt lgkmcnt(0)")
        for t in range(4):
            e(f"v_cmp_eq_u32 vcc, {t}, v15"); e("s_nop 1")
            for r in range(4): e(f"v_cndmask_b32 v{40+4*t+r}, 0, v{28+r}, vcc")
    def tile_loads(s, j, treg, dummy=False):
        e = s.e
        e(f"s_lshr_b32 s52, s{treg}, 9"); e("s_lshl_b32 s52, s52, 5"); e("s_add_u32 s52, s52, s32"); e("s_lshl_b32 s52, s52, 22")
        e(f"s_and_b32 s53, s{treg}, 511"); e("s_lshl_b32 s53, s53, 13"); e("s_add_u32 s52, s52, s53"); e("s_add_u32 s53, s52, 4096")
        base = 64 + 64*j
        pg = s.o.get("pg", 4); pw = s.o.get("pace", 0) if dummy else 0
        def pace(k):
            if pw and k % pg == 0 and (j*17 + k) > pw: e(f"s_waitcnt vmcnt({pw})")
        for u in range(8):
            r = base + 4*u; pace(u)
            e(f"buffer_load_dwordx4 v[{r}:{r+3}], v2, s[40:43], s{52 + u//4} offen offset:{(u%4)*1024} nt")
        for u in range(8):
            r = base + 32 + 4*u; pace(8+u)
            e(f"buffer_load_dwordx4 v[{r}:{r+3}], v3, s[44:47], s{52 + u//4} offen offset:{(u%4)*1024} nt")
        if dummy:
            e("buffer_load_dword v8, v3, s[40:43], s52 offen nt")
        else:
            e(f"v_mov_b32 v{5+j}, 1"); e("s_mov_b64 exec, 1")
            e(f"buffer_atomic_add v{5+j}, v4, s[36:39], 0 offen sc0")
            e("s_mov_b64 exec, -1")
    def consume(s, j):
        e = s.e
        base = 64 + 64*j
        if s.o.get("nocomp"): return
        for t in range(4):
            for a in range(2):
                u = 4*a + t; r = base + 4*u; acc = 20 + 4*a
                c = "0" if t == 0 else f"v[{acc}:{acc+3}]"
                e(f"v_mfma_f32_16x16x32_bf16 v[{acc}:{acc+3}], v[{r}:{r+3}], v[{40+4*t}:{43+4*t}], {c}")
        e("s_nop 7")
        D = "row_mask:0xf"
        e(f"v_add_f32_dpp v9, v21, v20 row_ror:12 {D} bank_mask:0x1")
        e(f"v_add_f32_dpp v9, v24, v25 row_ror:4 {D} bank_mask:0x2")
        e(f"v_add_f32_dpp v9, v22, v9 row_ror:8 {D} bank_mask:0x1")
        e(f"v_add_f32_dpp v9, v26, v9 row_ror:12 {D} bank_mask:0x2")
        e(f"v_add_f32_dpp v9, v23, v9 row_ror:4 {D} bank_mask:0x1")
        e(f"v_add_f32_dpp v9, v27, v9 row_ror:8 {D} bank_mask:0x2")
        s.wred("v_max_f32", 14, 9)
        e("s_nop 0"); e("v_readlane_b32 s54, v14, 63"); e("s_nop 1")
        e("v_max_f32 v14, s54, v12")
        e("v_sub_f32 v15, v12, v14"); e("v_sub_f32 v10, v9, v14")
        e("v_mul_f32 v15, s55, v15"); e("v_mul_f32 v10, s55, v10")
        e("v_exp_f32 v15, v15"); e("v_exp_f32 v10, v10")
        e("v_mov_b32 v12, v14")
        e("v_fma_f32 v13, v13, v15, v10")
        for r in range(4): e(f"v_mul_f32 v{16+r}, v{16+r}, v15")
        e("v_cvt_pk_bf16_f32 v10, v10, v10")
        e("s_nop 1")
        def ands(u):
            b = 28 + 4*(u & 1)
            for r in range(4): e(f"v_and_b32_dpp v{b+r}, v10, v{36+r} row_newbcast:{u} row_mask:0xf bank_mask:0xf")
        ands(0)
        for u in range(8):
            if u < 7: ands(u+1)
            else: e("s_nop 1")
            r = base + 32 + 4*u; b = 28 + 4*(u & 1)
            e(f"v_mfma_f32_16x16x32_bf16 v[16:19], v[{r}:{r+3}], v[{b}:{b+3}], v[16:19]")
    def streamer(s):
        e = s.e; NB = s.NB
        s.srd(40, 6, 0x10000000); s.srd(44, 8, 0x10000000)
        e("v_bfe_u32 v1, v0, 2, 2"); e("v_lshlrev_b32 v2, 8, v1")
        e("v_and_b32 v1, 3, v0"); e("v_lshl_add_u32 v2, v1, 4, v2")
        e("v_lshrrev_b32 v1, 4, v0"); e("v_lshl_add_u32 v2, v1, 6, v2")
        e("v_lshlrev_b32 v3, 4, v0")
        if s.o.get("klin"): e("v_mov_b32 v2, v3")
        e("s_lshl_b32 s57, s33, 2"); e("s_add_u32 s57, s57, s31")
        def prologue(j0, j1):
            for j in range(j0, j1): s.tile_loads(j, 60+j, dummy=True)
        for j in range(NB): e(f"s_add_u32 s{60+j}, s57, {32*j}")
        p0 = s.o.get("p0", 1); p1 = s.o.get("p1", 1)
        hyb = s.o.get("hyb", 0)
        pfc = s.o.get("pfc", 0)
        if hyb:
            assert NB == 2
            e("s_cmp_eq_u32 s95, 1"); e("s_cbranch_scc1 L_nopf")
            if s.o.get("xt", 1):
                e("s_lshr_b32 s63, s33, 1"); e("s_lshl_b32 s63, s63, 2"); e("s_add_u32 s63, s63, s31"); e("s_add_u32 s63, s63, 128")
                s.tile_loads(2, 63, dummy=True)
            prologue(0, NB)
            s.lab("L_nopf")
        else:
            e("s_barrier")
            if pfc: e(f"s_cmp_lt_u32 s33, {pfc}"); e("s_cbranch_scc1 L_nopf")
            prologue(0, p0)
            if pfc: s.lab("L_nopf")
        e(f"s_lshl_b32 s58, s32, 13"); e(f"s_add_u32 s58, s58, {W_CNT}"); e("v_mov_b32 v4, s58")
        for j in range(NB):
            e(f"s_add_u32 s58, s57, {(32*(NB+j) - 2*NB*32) & 0xffffffff}"); e(f"v_mov_b32 v{5+j}, s58")
        e("v_and_b32 v1, 15, v0")
        for r in range(4): e(f"v_mov_b32 v{36+r}, 0")
        e("v_mov_b32 v14, 0xffff"); e("v_mov_b32 v15, 0xffff0000")
        for r in range(4):
            e(f"v_cmp_eq_u32 vcc, {2*r}, v1"); e("s_nop 1"); e(f"v_cndmask_b32 v{36+r}, v{36+r}, v14, vcc")
            e(f"v_cmp_eq_u32 vcc, {2*r+1}, v1"); e("s_nop 1"); e(f"v_cndmask_b32 v{36+r}, v{36+r}, v15, vcc")
        e(f"v_mov_b32 v9, {hex(NEG)}")
        s.init_state()
        e(f"s_mov_b32 s55, {hex(C_SM)}")
        e("s_mov_b32 s59, 0")
        e("s_mov_b32 s64, 0")
        e("s_waitcnt lgkmcnt(0)"); e(f"s_add_u32 s30, s30, {hex(TAGC)}")
        if hyb:
            e("s_cmp_eq_u32 s95, 1"); e("s_cbranch_scc0 L_pb1")
            e("s_barrier")
            e("s_barrier")
            apf = s.o.get("apf", 2)
            prologue(0, apf)
            if apf < NB:
                e("s_barrier")
                prologue(apf, NB)
                e("s_branch L_pb1x")
            s.lab("L_pb1")
            e("s_barrier")
            s.lab("L_pb1x")
        else:
            if not s.o.get("noba"): e("s_barrier")
            prologue(p0, p0+p1)
            e("s_barrier")
            if pfc:
                e(f"s_cmp_lt_u32 s33, {pfc}"); e("s_cbranch_scc0 L_pfdone")
                prologue(0, p0)
                s.lab("L_pfdone")
            prologue(p0+p1, NB)
        s.load_q(0)
        if hyb and s.o.get("xt", 1):
            e("s_cmp_eq_u32 s95, 1"); e("s_cbranch_scc1 L_stream")
            e(f"s_waitcnt vmcnt({2*17})")
            s.consume(2)
        s.lab("L_stream")
        for j in range(NB):
            s.lab(f"L_pos{j}")
            e(f"s_waitcnt vmcnt({(NB-1)*17})")
            e("s_cmp_eq_u32 s64, 0"); e(f"s_cbranch_scc1 L_nd{j}")
            e("s_waitcnt vmcnt(0)")
            s.lab(f"L_nd{j}")
            e(f"s_lshr_b32 s57, s{60+j}, 9"); e("s_cmp_lg_u32 s57, s59"); e(f"s_cbranch_scc1 L_sw{j}")
            s.lab(f"L_swr{j}")
            e(f"v_readfirstlane_b32 s58, v{5+j}")
            s.consume(j)
            e("s_cmp_eq_u32 s64, 0"); e(f"s_cbranch_scc0 L_dr{j}")
            e(f"s_add_u32 s{60+j}, s58, {2*NB*32}")
            e(f"s_cmp_ge_u32 s{60+j}, 1024"); e(f"s_cbranch_scc1 L_stop{j}")
            s.tile_loads(j, 60+j)
            if j == NB-1: e("s_branch L_pos0")
        for j in range(NB):
            nxt = f"L_pos{(j+1) % NB}"
            s.lab(f"L_stop{j}")
            e(f"s_mov_b32 s64, {NB-1}"); e(f"s_branch {nxt}")
            s.lab(f"L_dr{j}")
            e("s_sub_u32 s64, s64, 1"); e("s_cmp_eq_u32 s64, 0"); e("s_cbranch_scc1 L_sdone")
            e(f"s_branch {nxt}")
            s.lab(f"L_sw{j}")
            s.save_state(0)
            s.init_state()
            s.load_q(1)
            e("s_mov_b32 s59, 1")
            e(f"s_branch L_swr{j}")
        s.lab("L_sdone")
        e("s_nop 7")
        s.save_state("s59")
        e("s_cmp_eq_u32 s59, 1"); e("s_cbranch_scc1 L_ssaved")
        s.init_state(); e("s_nop 1")
        s.save_state(1)
        s.lab("L_ssaved")
        e("s_waitcnt lgkmcnt(0)")
        e("s_barrier")
```

```python
KN = "adaLN_cond__mha_block_cached__swiglu_ffn__decode_kernel"
CEXP = 0x3e0293ee
import struct, math
def f2u(x): return struct.unpack("<I", struct.pack("<f", x))[0]
C_SM = f2u(128 ** -0.5 * math.log2(math.e))
LOG2E = f2u(math.log2(math.e))
NEG = f2u(-1e30)
TAGC = 0x9E3779B9
W_CNT, W_MOD, W_Q, W_X1, W_PART, W_Y, W_D = 0x10000, 0x60000, 0x68000, 0x70000, 0x80000, 0x110000, 0x160000
W_MODP, W_QP = 0x1F0000, 0x208000
W_SIZE = 0x250000
W_PA, W_PM = 0x80000, 0xC0000
L_WQ = 0; L_MODS = 40960; L_MOD2 = 40960; L_WO = 61440
L_GATE = 20480; L_UP = 61440; L_DOWN = 102400
L_ACT = 143360; L_H = L_ACT + 2560; L_Q = L_H + 2560; L_ST = L_Q + 512; L_OH = L_ST + 4352; L_GU = L_OH + 512; L_AC = L_GU + 1024
L_END = L_AC + 128
L_ST2 = 0
L_A2 = 0; L_W2 = 4608; HROW = 1344
L_ACTA = L_OH
LDS = 159744
assert L_END <= LDS
SPIN = 60000

class G:
    def __init__(s, NB=3, PACE=8, stamps=False, mode="full", sw=4, late=0, **kw):
        s.L = []; s.NB = NB; s.PACE = PACE; s.stamps = stamps; s.mode = mode; s.n = 0; s.sw = sw; s.late = late; s.o = kw
    def e(s, x): s.L.append("  " + x)
    def lab(s, x): s.L.append(x + ":")
    def uniq(s, p): s.n += 1; return f"{p}_{s.n}"
    def srd(s, d, p, size):
        s.e(f"s_mov_b32 s{d}, s{p}"); s.e(f"s_and_b32 s{d+1}, s{p+1}, 0xffff")
        s.e(f"s_mov_b32 s{d+2}, {hex(size)}"); s.e(f"s_mov_b32 s{d+3}, 0x20000")
    def stamp(s, k):
        if s.stamps:
            s.e("s_memrealtime s[90:91]"); s.e("s_waitcnt lgkmcnt(0)"); s.e(f"s_mov_b32 s{80+k}, s90")
    def stamp_fill(s, k):
        if s.stamps:
            s.e("s_memrealtime s[90:91]"); s.e("s_waitcnt lgkmcnt(0)")
            for j in range(k, 8): s.e(f"s_mov_b32 s{80+j}, s90")
    def stamp_write(s):
        if s.stamps and s.o.get("dbg"):
            e = s.e
            e("s_cmp_eq_u32 s2, 7"); e("s_cbranch_scc1 L_dbgw0"); e("s_cmp_eq_u32 s2, 5"); e("s_cbranch_scc0 L_dbgx")
            e("s_load_dwordx2 s[92:93], s[0:1], 96"); e("s_waitcnt lgkmcnt(0)"); e("s_add_u32 s92, s92, 32"); e("s_addc_u32 s93, s93, 0"); e("s_branch L_dbgw1")
            s.lab("L_dbgw0")
            e("s_load_dwordx2 s[92:93], s[0:1], 96"); e("s_waitcnt lgkmcnt(0)")
            s.lab("L_dbgw1")
            e("v_mov_b32 v250, 0"); e("s_mov_b64 exec, 1")
            for j in range(0, 8, 2):
                e(f"v_mov_b32 v252, s{80+j}"); e(f"v_mov_b32 v253, s{81+j}")
                e(f"global_store_dwordx2 v250, v[252:253], s[92:93] offset:{j*4}"); e("s_nop 1")
            e("s_mov_b64 exec, -1")
            s.lab("L_dbgx")
        elif s.stamps:
            s.e("s_add_u32 s92, s28, 0x10000000"); s.e("s_addc_u32 s93, s29, 0")
            s.e("s_lshl_b32 s94, s2, 5"); s.e("v_mov_b32 v250, s94")
            s.e("s_mov_b64 exec, 1")
            for j in range(0, 8, 2):
                s.e(f"v_mov_b32 v252, s{80+j}"); s.e(f"v_mov_b32 v253, s{81+j}")
                s.e(f"global_store_dwordx2 v250, v[252:253], s[92:93] offset:{j*4}")
                s.e("s_nop 1")
            s.e("s_mov_b64 exec, -1")
    def wred(s, op, t, src):
        e = s.e
        e("s_nop 1")
        e(f"{op}_dpp v{t}, v{src}, v{src} row_ror:8 row_mask:0xf bank_mask:0xf")
        for r in (4, 2, 1):
            e("s_nop 1"); e(f"{op}_dpp v{t}, v{t}, v{t} row_ror:{r} row_mask:0xf bank_mask:0xf")
        e("s_nop 1"); e(f"{op}_dpp v{t}, v{t}, v{t} row_bcast:15 row_mask:0xa bank_mask:0xf")
        e("s_nop 1"); e(f"{op}_dpp v{t}, v{t}, v{t} row_bcast:31 row_mask:0xc bank_mask:0xf")
    def poll(s, loads, t0, wide=4, pre=None, execs=None, xloads=(), xtags=(), bar2=False, rounds=None):
        e = s.e
        lp = s.uniq("L_poll"); dn = s.uniq("L_polld")
        def issue():
            for k, (d, vo, so, imm) in enumerate(loads):
                if execs and execs.get(k): e("s_mov_b32 exec_lo, -1"); e("s_mov_b32 exec_hi, 0")
                off = f" offset:{imm}" if imm else ""
                e(f"buffer_load_dwordx{wide} v[{d}:{d+wide-1}], v{vo}, s[36:39], {so} offen{off} sc1")
                if execs and execs.get(k): e("s_mov_b64 exec, -1")
            for x in xloads: e(x)
        def check():
            tags = [d+q for (d, vo, so, imm) in loads for q in ([2] if wide == 3 else range(1, wide, 2))] + list(xtags)
            if len(tags) <= 2:
                e(f"v_xor_b32 v{t0}, s30, v{tags[0]}")
                if len(tags) == 2: e(f"v_xor_b32 v{t0+1}, s30, v{tags[1]}"); e(f"v_or_b32 v{t0}, v{t0}, v{t0+1}")
            else:
                e(f"v_max3_u32 v{t0}, s30, v{tags[0]}, v{tags[1]}"); e(f"v_min3_u32 v{t0+1}, s30, v{tags[0]}, v{tags[1]}")
                r = tags[2:]
                while r:
                    a = r[0]; b = r[1] if len(r) > 1 else r[0]; r = r[2:]
                    e(f"v_max3_u32 v{t0}, v{t0}, v{a}, v{b}"); e(f"v_min3_u32 v{t0+1}, v{t0+1}, v{a}, v{b}")
                e(f"v_xor_b32 v{t0}, v{t0}, v{t0+1}")
            e(f"v_cmp_ne_u32 vcc, 0, v{t0}")
        e(f"s_mov_b32 s56, {SPIN}")
        if bar2:
            ok = s.uniq("L_pok"); w = s.uniq("L_pw")
            issue(); e("s_waitcnt vmcnt(0)"); check()
            e("s_and_b64 vcc, exec, vcc"); e(f"s_cbranch_vccz {ok}")
            issue(); e("s_barrier"); e(f"s_branch {w}")
            s.lab(ok); e("s_barrier"); e(f"s_branch {dn}")
        if rounds:
            T, N, emit = rounds
            rl = s.uniq("L_prd")
            s.lab(rl)
            issue()
            for k in range(T): emit()
            e(f"s_waitcnt vmcnt({min(63, 16*T)})"); check()
            e("s_and_b64 vcc, exec, vcc"); e(f"s_cbranch_vccz {dn}")
            e(f"s_cmp_lt_u32 s65, {N}"); e(f"s_cbranch_scc1 {rl}")
        s.lab(lp)
        issue()
        if bar2: s.lab(w)
        e("s_waitcnt vmcnt(0)")
        check()
        e("s_sub_u32 s56, s56, 1")
        e("s_cmp_eq_u32 s56, 0"); e(f"s_cbranch_scc1 {dn}")
        e("s_and_b64 vcc, exec, vcc")
        e(f"s_cbranch_vccnz {lp}")
        s.lab(dn)
    def lds_tile_setup(s):
        e = s.e
        s.srd(40, 6, 0x10000000); s.srd(44, 8, 0x10000000)
        e("v_bfe_u32 v1, v0, 2, 2"); e("v_lshlrev_b32 v2, 8, v1")
        e("v_and_b32 v1, 3, v0"); e("v_lshl_add_u32 v2, v1, 4, v2")
        e("v_lshrrev_b32 v1, 4, v0"); e("v_lshl_add_u32 v2, v1, 6, v2")
        e("v_lshlrev_b32 v4, 4, v0")
        e("s_mov_b32 s65, 0")
    def lds_tile(s):
        e = s.e
        e("s_lshr_b32 s52, s65, 2"); e("s_lshl_b32 s52, s52, 4"); e("s_and_b32 s53, s65, 3"); e("s_add_u32 s52, s52, s53")
        e("s_lshr_b32 s53, s33, 1"); e("s_lshl_b32 s53, s53, 2"); e("s_add_u32 s52, s52, s53"); e("s_add_u32 s52, s52, 144")
        e("s_lshl_b32 s52, s52, 13"); e("s_lshl_b32 s53, s32, 22"); e("s_add_u32 s52, s52, s53")
        e("s_lshl_b32 s64, s65, 14")
        for (vo, srd) in (("v2", "s[40:43]"), ("v4", "s[44:47]")):
            e("s_mov_b32 s59, s52")
            for u in range(8):
                e("s_mov_b32 m0, s64"); e("s_add_u32 s64, s64, 1024")
                e(f"buffer_load_dwordx4 {vo}, {srd}, s59 offen nt lds")
                e("s_add_u32 s59, s59, 1024")
        e("s_add_u32 s65, s65, 1")
    def ppoll(s, gens, t0, consume, execs=None):
        e = s.e; G = len(gens); n = len(gens[0])
        lp = s.uniq("L_pp"); jn = s.uniq("L_ppj")
        def issue(g):
            for k, (d, vo, so, imm, wide) in enumerate(gens[g]):
                if execs and execs.get(k): e("s_mov_b32 exec_hi, 0")
                off = f" offset:{imm}" if imm else ""
                e(f"buffer_load_dwordx{wide} v[{d}:{d+wide-1}], v{vo}, s[36:39], {so} offen{off} sc1")
                if execs and execs.get(k): e("s_mov_b64 exec, -1")
        for g in range(G): issue(g)
        e(f"s_mov_b32 s56, {SPIN}")
        s.lab(lp)
        for g in range(G):
            e(f"s_waitcnt vmcnt({n*(G-1)})")
            tags = [d+q for (d, vo, so, imm, wide) in gens[g] for q in ([2] if wide == 3 else range(1, wide, 2))]
            if len(tags) == 1:
                e(f"v_cmp_ne_u32 vcc, s30, v{tags[0]}")
            elif len(tags) == 2:
                e(f"v_xor_b32 v{t0}, s30, v{tags[0]}"); e(f"v_xor_b32 v{t0+1}, s30, v{tags[1]}"); e(f"v_or_b32 v{t0}, v{t0}, v{t0+1}")
                e(f"v_cmp_ne_u32 vcc, 0, v{t0}")
            else:
                e(f"v_max3_u32 v{t0}, s30, v{tags[0]}, v{tags[1]}"); e(f"v_min3_u32 v{t0+1}, s30, v{tags[0]}, v{tags[1]}")
                r = tags[2:]
                while r:
                    a = r[0]; b = r[1] if len(r) > 1 else r[0]; r = r[2:]
                    e(f"v_max3_u32 v{t0}, v{t0}, v{a}, v{b}"); e(f"v_min3_u32 v{t0+1}, v{t0+1}, v{a}, v{b}")
                e(f"v_cmp_ne_u32 vcc, v{t0}, v{t0+1}")
            e("s_nop 0"); e("s_and_b64 vcc, exec, vcc")
            e(f"s_cbranch_vccz {jn}_g{g}")
            issue(g)
        e("s_sub_u32 s56, s56, 1"); e("s_cmp_eq_u32 s56, 0"); e(f"s_cbranch_scc0 {lp}")
        e("s_waitcnt vmcnt(0)")
        for g in range(G):
            s.lab(f"{jn}_g{g}")
            consume(g)
            if g < G-1: e(f"s_branch {jn}")
        s.lab(jn)
    def dma(s, n, voff, srd, sreg, step, ldsbase, nt=False):
        e = s.e
        nt = True
        for i in range(n):
            e(f"s_mov_b32 m0, {ldsbase + i*1024}")
            if i: e(f"s_add_u32 s{sreg}, s{sreg}, {step}")
            else: e("s_nop 0")
            e(f"buffer_load_dwordx4 v{voff}, s[{srd}:{srd+3}], s{sreg} offen" + (" nt" if nt else "") + " lds")
    def gemv(s, acc, va, vb, RB, steps, r0, batch=10, astep=64, zero=True):
        e = s.e
        k = 0; first = zero
        while k < steps:
            nb = min(batch, steps - k)
            for j in range(nb):
                r = r0 + j*8; st = k + j
                e(f"ds_read_b128 v[{r}:{r+3}], v{va} offset:{st*astep}")
                e(f"ds_read_b64_tr_b16 v[{r+4}:{r+5}], v{vb} offset:{st*32*RB}")
                e(f"ds_read_b64_tr_b16 v[{r+6}:{r+7}], v{vb} offset:{st*32*RB + 4*RB}")
            e("s_waitcnt lgkmcnt(0)")
            for j in range(nb):
                r = r0 + j*8
                c = "0" if first else f"v[{acc}:{acc+3}]"; first = False
                e(f"v_mfma_f32_16x16x32_bf16 v[{acc}:{acc+3}], v[{r}:{r+3}], v[{r+4}:{r+7}], {c}")
            k += nb
        e("s_nop 7")
    def gemv4(s, acc, va, vb, RB, steps, r0):
        e = s.e
        for st in range(steps):
            r = r0 + st*20
            e(f"ds_read_b128 v[{r}:{r+3}], v{va} offset:{st*64}")
            for q in range(4):
                e(f"ds_read_b64_tr_b16 v[{r+4+4*q}:{r+5+4*q}], v{vb} offset:{st*32*RB + q*32}")
                e(f"ds_read_b64_tr_b16 v[{r+6+4*q}:{r+7+4*q}], v{vb} offset:{st*32*RB + 4*RB + q*32}")
        for st in range(steps):
            r = r0 + st*20
            e(f"s_waitcnt lgkmcnt({min(15, (steps-1-st)*9)})")
            for q in range(4):
                c = "0" if st == 0 else f"v[{acc+4*q}:{acc+4*q+3}]"
                e(f"v_mfma_f32_16x16x32_bf16 v[{acc+4*q}:{acc+4*q+3}], v[{r}:{r+3}], v[{r+4+4*q}:{r+7+4*q}], {c}")
        e("s_nop 7")
    def gemv_addr(s, va, vb, abase, arow, bbase, RB, t):
        e = s.e
        e(f"v_and_b32 v{t}, 1, v0"); e(f"v_mul_u32_u24 v{va}, {arow}, v{t}")
        e(f"v_lshrrev_b32 v{t}, 4, v0"); e(f"v_lshl_add_u32 v{va}, v{t}, 4, v{va}")
        e(f"v_add_u32 v{va}, {abase}, v{va}")
        e(f"v_lshlrev_b32 v{vb}, 3, v{t}")
        e(f"v_bfe_u32 v{t}, v0, 2, 2"); e(f"v_add_u32 v{vb}, v{vb}, v{t}")
        e(f"v_mul_u32_u24 v{vb}, {RB}, v{vb}")
        e(f"v_and_b32 v{t}, 3, v0"); e(f"v_lshl_add_u32 v{vb}, v{t}, 3, v{vb}")
        if isinstance(bbase, int): e(f"v_add_u32 v{vb}, {bbase}, v{vb}")
        else: e(f"v_add_u32 v{vb}, {bbase}, v{vb}")
    def unpack(s, lo, hi, src):
        s.e(f"v_and_b32 v{hi}, 0xffff0000, v{src}"); s.e(f"v_lshlrev_b32 v{lo}, 16, v{src}")
    def rnd2(s, a, b, t):
        s.e(f"v_cvt_pk_bf16_f32 v{t}, v{a}, v{b}"); s.unpack(a, b, t)

    def save_state(s, bexpr):
        e = s.e
        e("s_lshl_b32 s57, s31, 1"); e(f"s_add_u32 s57, s57, {bexpr}"); e("s_mul_i32 s57, s57, 544"); e(f"s_add_u32 s57, s57, {L_ST}")
        s.wred("v_add_f32", 14, 13)
        e("v_lshrrev_b32 v15, 4, v0"); e("v_lshlrev_b32 v15, 7, v15"); e("v_and_b32 v1, 15, v0"); e("v_lshl_add_u32 v15, v1, 2, v15")
        e("v_add_u32 v15, s57, v15")
        e("s_mov_b32 exec_lo, 0x00ff00ff"); e("s_mov_b32 exec_hi, 0x00ff00ff")
        for r in range(4): e(f"ds_write_b32 v15, v{16+r} offset:{r*32}")
        e("s_mov_b32 exec_lo, 0"); e("s_mov_b32 exec_hi, 0x80000000")
        e("v_mov_b32 v13, v14"); e("v_mov_b32 v15, s57")
        e("ds_write_b64 v15, v[12:13] offset:512")
        e("s_mov_b64 exec, -1")
    def init_state(s):
        e = s.e
        e(f"v_mov_b32 v12, {hex(NEG)}"); e("v_mov_b32 v13, 0")
        for r in range(4): e(f"v_mov_b32 v{16+r}, 0")
    def load_q(s, b):
        e = s.e
        e("v_bfe_u32 v14, v0, 2, 2"); e("v_lshrrev_b32 v15, 4, v0"); e("v_lshl_add_u32 v14, v15, 2, v14"); e("v_lshlrev_b32 v14, 4, v14")
        e(f"v_add_u32 v14, {L_Q + b*256}, v14")
        e(f"ds_read_b128 v[28:31], v14")
        e("v_and_b32 v15, 3, v0")
        e("s_waitcnt lgkmcnt(0)")
        for t in range(4):
            e(f"v_cmp_eq_u32 vcc, {t}, v15"); e("s_nop 1")
            for r in range(4): e(f"v_cndmask_b32 v{40+4*t+r}, 0, v{28+r}, vcc")
    def tile_loads(s, j, treg, dummy=False):
        e = s.e
        e(f"s_lshr_b32 s52, s{treg}, 9"); e("s_lshl_b32 s52, s52, 5"); e("s_add_u32 s52, s52, s32"); e("s_lshl_b32 s52, s52, 22")
        e(f"s_and_b32 s53, s{treg}, 511"); e("s_lshl_b32 s53, s53, 13"); e("s_add_u32 s52, s52, s53"); e("s_add_u32 s53, s52, 4096")
        base = 64 + 64*j
        pg = s.o.get("pg", 4); pw = s.o.get("pace", 0) if dummy else 0
        def pace(k):
            if pw and k % pg == 0 and (j*17 + k) > pw: e(f"s_waitcnt vmcnt({pw})")
        for u in range(8):
            r = base + 4*u; pace(u)
            e(f"buffer_load_dwordx4 v[{r}:{r+3}], v2, s[40:43], s{52 + u//4} offen offset:{(u%4)*1024} nt")
        for u in range(8):
            r = base + 32 + 4*u; pace(8+u)
            e(f"buffer_load_dwordx4 v[{r}:{r+3}], v3, s[44:47], s{52 + u//4} offen offset:{(u%4)*1024} nt")
        if dummy:
            e("buffer_load_dword v8, v3, s[40:43], s52 offen nt")
        else:
            e(f"v_mov_b32 v{5+j}, 1"); e("s_mov_b64 exec, 1")
            e(f"buffer_atomic_add v{5+j}, v4, s[36:39], 0 offen sc0")
            e("s_mov_b64 exec, -1")
    def tile_loads_lds(s, treg, x):
        e = s.e
        e(f"s_lshr_b32 s52, s{treg}, 9"); e("s_lshl_b32 s52, s52, 5"); e("s_add_u32 s52, s52, s32"); e("s_lshl_b32 s52, s52, 22")
        e(f"s_and_b32 s53, s{treg}, 511"); e("s_lshl_b32 s53, s53, 13"); e("s_add_u32 s52, s52, s53")
        e("s_lshl_b32 s64, s31, 14"); e(f"s_add_u32 s64, s64, {x*65536}")
        for (vo, srd) in (("v2", "s[40:43]"), ("v3", "s[44:47]")):
            e("s_mov_b32 s59, s52")
            for u in range(8):
                e("s_mov_b32 m0, s64"); e("s_nop 0")
                e(f"buffer_load_dwordx4 {vo}, {srd}, s59 offen nt lds")
                e("s_add_u32 s64, s64, 1024"); e("s_add_u32 s59, s59, 1024")
    def tile_loads_half(s, j, treg):
        e = s.e; H0 = 1024 - s.o["ht"]
        e(f"s_sub_u32 s53, s{treg}, {H0}"); e("s_lshl_b32 s53, s53, 12"); e(f"s_add_u32 s53, s53, {(H0-512) << 13}")
        e("s_add_u32 s52, s32, 32"); e("s_lshl_b32 s52, s52, 22"); e("s_add_u32 s52, s52, s53")
        base = 64 + 64*j
        for u in range(4): e(f"buffer_load_dwordx4 v[{base+4*u}:{base+4*u+3}], v2, s[40:43], s52 offen offset:{u*1024} nt")
        for u in range(4): e(f"buffer_load_dwordx4 v[{base+32+4*u}:{base+32+4*u+3}], v3, s[44:47], s52 offen offset:{u*1024} nt")
        e(f"v_mov_b32 v{5+j}, 1"); e("s_mov_b64 exec, 1")
        e(f"buffer_atomic_add v{5+j}, v4, s[36:39], 0 offen sc0")
        e("s_mov_b64 exec, -1")
    def consume(s, j, half=False):
        e = s.e
        base = 64 + 64*j
        if s.o.get("nocomp"): return
        if half: e(f"v_mov_b32 v14, {hex(NEG)}")
        for t in range(4):
            for a in range(1 if half else 2):
                u = 4*a + t; r = base + 4*u; acc = 20 + 4*a
                c = "0" if t == 0 else f"v[{acc}:{acc+3}]"
                e(f"v_mfma_f32_16x16x32_bf16 v[{acc}:{acc+3}], v[{r}:{r+3}], v[{40+4*t}:{43+4*t}], {c}")
                if half and t < 3: e("s_nop 1")
        e("s_nop 7")
        D = "row_mask:0xf"
        if half: e(f"v_mov_b32_dpp v9, v14 quad_perm:[0,1,2,3] {D} bank_mask:0x2")
        e(f"v_add_f32_dpp v9, v21, v20 row_ror:12 {D} bank_mask:0x1")
        if not half: e(f"v_add_f32_dpp v9, v24, v25 row_ror:4 {D} bank_mask:0x2")
        e(f"v_add_f32_dpp v9, v22, v9 row_ror:8 {D} bank_mask:0x1")
        if not half: e(f"v_add_f32_dpp v9, v26, v9 row_ror:12 {D} bank_mask:0x2")
        e(f"v_add_f32_dpp v9, v23, v9 row_ror:4 {D} bank_mask:0x1")
        if not half: e(f"v_add_f32_dpp v9, v27, v9 row_ror:8 {D} bank_mask:0x2")
        s.wred("v_max_f32", 14, 9)
        e("s_nop 0"); e("v_readlane_b32 s54, v14, 63"); e("s_nop 1")
        e("v_max_f32 v14, s54, v12")
        e("v_sub_f32 v15, v12, v14"); e("v_sub_f32 v10, v9, v14")
        e("v_mul_f32 v15, s55, v15"); e("v_mul_f32 v10, s55, v10")
        e("v_exp_f32 v15, v15"); e("v_exp_f32 v10, v10")
        e("v_mov_b32 v12, v14")
        e("v_fma_f32 v13, v13, v15, v10")
        for r in range(4): e(f"v_mul_f32 v{16+r}, v{16+r}, v15")
        e("v_cvt_pk_bf16_f32 v10, v10, v10")
        e("s_nop 1")
        def ands(u):
            b = 28 + 4*(u & 1)
            for r in range(4): e(f"v_and_b32_dpp v{b+r}, v10, v{36+r} row_newbcast:{u} row_mask:0xf bank_mask:0xf")
        ands(0)
        nu = 4 if half else 8
        for u in range(nu):
            if u < nu-1: ands(u+1)
            else: e("s_nop 1")
            r = base + 32 + 4*u; b = 28 + 4*(u & 1)
            e(f"v_mfma_f32_16x16x32_bf16 v[16:19], v[{r}:{r+3}], v[{b}:{b+3}], v[16:19]")
    def streamer(s):
        e = s.e; NB = s.NB
        s.srd(40, 6, 0x10000000); s.srd(44, 8, 0x10000000)
        e("v_bfe_u32 v1, v0, 2, 2"); e("v_lshlrev_b32 v2, 8, v1")
        e("v_and_b32 v1, 3, v0"); e("v_lshl_add_u32 v2, v1, 4, v2")
        e("v_lshrrev_b32 v1, 4, v0"); e("v_lshl_add_u32 v2, v1, 6, v2")
        e("v_lshlrev_b32 v3, 4, v0")
        if s.o.get("klin"): e("v_mov_b32 v2, v3")
        e("s_lshl_b32 s57, s33, 2"); e("s_add_u32 s57, s57, s31")
        def prologue(j0, j1):
            for j in range(j0, j1): s.tile_loads(j, 60+j, dummy=True)
        for j in range(NB): e(f"s_add_u32 s{60+j}, s57, {32*j}")
        p0 = s.o.get("p0", 1); p1 = s.o.get("p1", 1)
        hyb = s.o.get("hyb", 0)
        pfc = s.o.get("pfc", 0)
        if hyb:
            assert NB == 2
            e("s_cmp_eq_u32 s95, 1"); e("s_cbranch_scc1 L_nopf")
            if s.o.get("xt", 1):
                e("s_lshr_b32 s63, s33, 1"); e("s_lshl_b32 s63, s63, 2"); e("s_add_u32 s63, s63, s31"); e("s_add_u32 s63, s63, 128")
                if not s.o.get("ord"): s.tile_loads(2, 63, dummy=True)
            prologue(0, NB)
            if s.o.get("ord"):
                s.tile_loads(2, 63, dummy=True)
                if s.o.get("pil"):
                    e(f"s_waitcnt vmcnt({s.o.get('bsw', 0)})"); e("s_barrier")
                else:
                  for x in range(s.o.get("xl", 0)):
                    e("s_add_u32 s63, s63, 16")
                    s.tile_loads_lds(63, x)
            s.lab("L_nopf")
        else:
            e("s_barrier")
            if pfc: e(f"s_cmp_lt_u32 s33, {pfc}"); e("s_cbranch_scc1 L_nopf")
            prologue(0, p0)
            if pfc: s.lab("L_nopf")
        e(f"s_lshl_b32 s58, s32, 13"); e(f"s_add_u32 s58, s58, {W_CNT}"); e("v_mov_b32 v4, s58")
        for j in range(NB):
            e(f"s_add_u32 s58, s57, {(32*(NB+j) - 2*NB*32) & 0xffffffff}"); e(f"v_mov_b32 v{5+j}, s58")
        e("v_and_b32 v1, 15, v0")
        for r in range(4): e(f"v_mov_b32 v{36+r}, 0")
        e("v_mov_b32 v14, 0xffff"); e("v_mov_b32 v15, 0xffff0000")
        for r in range(4):
            e(f"v_cmp_eq_u32 vcc, {2*r}, v1"); e("s_nop 1"); e(f"v_cndmask_b32 v{36+r}, v{36+r}, v14, vcc")
            e(f"v_cmp_eq_u32 vcc, {2*r+1}, v1"); e("s_nop 1"); e(f"v_cndmask_b32 v{36+r}, v{36+r}, v15, vcc")
        e(f"v_mov_b32 v9, {hex(NEG)}")
        s.init_state()
        e(f"s_mov_b32 s55, {hex(C_SM)}")
        e("s_mov_b32 s59, 0")
        e("s_mov_b32 s64, 0")
        e("s_waitcnt lgkmcnt(0)"); e(f"s_add_u32 s30, s30, {hex(TAGC)}")
        if hyb:
            e("s_cmp_eq_u32 s95, 1"); e("s_cbranch_scc0 L_pb1")
            e("s_barrier")
            e("s_barrier")
            apf = s.o.get("apf", 2)
            if s.o.get("bp"):
                prologue(0, 1); e("s_barrier"); prologue(1, 2)
            else: prologue(0, apf)
            axt = s.o.get("axt", 0)
            if axt:
                e("s_lshr_b32 s63, s33, 1"); e("s_lshl_b32 s63, s63, 2"); e("s_add_u32 s63, s63, s31"); e(f"s_add_u32 s63, s63, {128 + 16*(1 + s.o.get('xl', 0))}")
            if axt == 1: s.tile_loads(2, 63, dummy=True)
            if axt == 2:
                e("s_barrier")
                s.tile_loads(2, 63, dummy=True)
                e("s_branch L_pb1x")
            if apf < NB:
                e("s_barrier")
                prologue(apf, NB)
                e("s_branch L_pb1x")
            s.lab("L_pb1")
            e("s_barrier")
            s.lab("L_pb1x")
        else:
            if not s.o.get("noba"): e("s_barrier")
            prologue(p0, p0+p1)
            e("s_barrier")
            if pfc:
                e(f"s_cmp_lt_u32 s33, {pfc}"); e("s_cbranch_scc0 L_pfdone")
                prologue(0, p0)
                s.lab("L_pfdone")
            prologue(p0+p1, NB)
        s.load_q(0)
        if hyb and s.o.get("xt", 1):
            e("s_cmp_eq_u32 s95, 1"); e("s_cbranch_scc1 " + ("L_aext" if s.o.get("axt") else "L_stream"))
            if not s.o.get("ord"):
                e(f"s_waitcnt vmcnt({2*17})")
                s.consume(2)
            else:
                xl = s.o.get("xl", 0)
                e("s_waitcnt vmcnt(0)")
                for j in range(NB):
                    e(f"v_readfirstlane_b32 s58, v{5+j}")
                    s.consume(j)
                    e(f"s_add_u32 s{60+j}, s58, {2*NB*32}")
                    s.tile_loads(j, 60+j)
                s.consume(2)
                if s.o.get("pil"): e("s_barrier")
                for x in range(xl):
                    e("s_lshl_b32 s57, s31, 14"); e(f"s_add_u32 s57, s57, {x*65536}")
                    e("v_add_u32 v15, s57, v3")
                    e("s_nop 7")
                    for u in range(16): e(f"ds_read_b128 v[{192+4*u}:{195+4*u}], v15 offset:{u*1024}")
                    e("s_waitcnt lgkmcnt(0)")
                    if x == xl-1: e("s_barrier")
                    s.consume(2)
        if s.o.get("axt"):
            e("s_branch L_stream")
            s.lab("L_aext")
            e(f"s_waitcnt vmcnt({17 if s.o['axt'] == 2 else 0})")
            for j in range(NB):
                e(f"v_readfirstlane_b32 s58, v{5+j}")
                s.consume(j)
                e(f"s_add_u32 s{60+j}, s58, {2*NB*32}")
                s.tile_loads(j, 60+j)
            e("s_waitcnt vmcnt(34)")
            s.consume(2)
        s.lab("L_stream")
        ht = s.o.get("ht", 0); H0 = 1024 - ht
        for j in range(NB):
            s.lab(f"L_pos{j}")
            if ht:
                assert NB == 2
                e(f"s_cmp_ge_u32 s{60+(1-j)}, {H0}"); e(f"s_cbranch_scc1 L_w9{j}")
                e(f"s_waitcnt vmcnt(17)"); e(f"s_branch L_w17{j}")
                s.lab(f"L_w9{j}"); e("s_waitcnt vmcnt(9)")
                s.lab(f"L_w17{j}")
            else: e(f"s_waitcnt vmcnt({(NB-1)*17})")
            e("s_cmp_eq_u32 s64, 0"); e(f"s_cbranch_scc1 L_nd{j}")
            e("s_waitcnt vmcnt(0)")
            s.lab(f"L_nd{j}")
            e(f"s_lshr_b32 s57, s{60+j}, 9")
            if ht: e("s_min_u32 s57, s57, 1")
            e("s_cmp_lg_u32 s57, s59"); e(f"s_cbranch_scc1 L_sw{j}")
            s.lab(f"L_swr{j}")
            e(f"v_readfirstlane_b32 s58, v{5+j}")
            if ht:
                e(f"s_cmp_ge_u32 s{60+j}, {H0}"); e(f"s_cbranch_scc1 L_ch{j}")
            s.consume(j)
            if ht:
                e(f"s_branch L_cd{j}")
                s.lab(f"L_ch{j}"); s.consume(j, half=True)
                s.lab(f"L_cd{j}")
            e("s_cmp_eq_u32 s64, 0"); e(f"s_cbranch_scc0 L_dr{j}")
            e(f"s_add_u32 s{60+j}, s58, {2*NB*32}")
            e(f"s_cmp_ge_u32 s{60+j}, {1024 + ht}"); e(f"s_cbranch_scc1 L_stop{j}")
            if ht:
                e(f"s_cmp_ge_u32 s{60+j}, {H0}"); e(f"s_cbranch_scc0 L_lf{j}")
                s.tile_loads_half(j, 60+j)
                e(f"s_branch L_pos{(j+1) % NB}")
                s.lab(f"L_lf{j}")
            s.tile_loads(j, 60+j)
            if j == NB-1: e("s_branch L_pos0")
        for j in range(NB):
            nxt = f"L_pos{(j+1) % NB}"
            s.lab(f"L_stop{j}")
            e(f"s_mov_b32 s64, {NB-1}"); e(f"s_branch {nxt}")
            s.lab(f"L_dr{j}")
            e("s_sub_u32 s64, s64, 1"); e("s_cmp_eq_u32 s64, 0"); e("s_cbranch_scc1 L_sdone")
            e(f"s_branch {nxt}")
            s.lab(f"L_sw{j}")
            s.save_state(0)
            s.init_state()
            s.load_q(1)
            e("s_mov_b32 s59, 1")
            e(f"s_branch L_swr{j}")
        s.lab("L_sdone")
        e("s_nop 7")
        s.save_state("s59")
        e("s_cmp_eq_u32 s59, 1"); e("s_cbranch_scc1 L_ssaved")
        s.init_state(); e("s_nop 1")
        s.save_state(1)
        s.lab("L_ssaved")
        e("s_waitcnt lgkmcnt(0)")
        e("s_barrier")
```

```python
import sys
from gk1 import *

class K(G):
    def lanes16(s): s.e("s_mov_b64 exec, 0xffff")
    def allx(s): s.e("s_mov_b64 exec, -1")
    def unpack_gr(s, d, g):
        s.e(f"v_lshlrev_b32 v{d}, 16, v{g}"); s.e(f"v_lshlrev_b32 v{d+1}, 16, v{g+2}")
        s.e(f"v_and_b32 v{d+2}, 0xffff0000, v{g}"); s.e(f"v_and_b32 v{d+3}, 0xffff0000, v{g+2}")
    def ln_mod(s, X, SG, CG, t):
        e = s.e
        for b in range(2):
            xs = [X + 4*j + 2*b + q for j in range(5) for q in range(2)]
            e(f"v_add_f32 v{t}, v{xs[0]}, v{xs[1]}")
            for r in xs[2:]: e(f"v_add_f32 v{t}, v{t}, v{r}")
            s.wred("v_add_f32", t+1, t)
            e("s_nop 0"); e(f"v_readlane_b32 s57, v{t+1}, 63"); e("s_nop 1")
            e(f"v_mov_b32 v{t}, s57"); e(f"v_mul_f32 v{t}, {hex(f2u(1/640))}, v{t}")
            e(f"v_sub_f32 v{t+2}, v{xs[0]}, v{t}"); e(f"v_mul_f32 v{t+3}, v{t+2}, v{t+2}")
            for r in xs[1:]:
                e(f"v_sub_f32 v{t+2}, v{r}, v{t}"); e(f"v_fma_f32 v{t+3}, v{t+2}, v{t+2}, v{t+3}")
            s.wred("v_add_f32", t+1, t+3)
            e("s_nop 0"); e(f"v_readlane_b32 s57, v{t+1}, 63"); e("s_nop 1")
            e(f"v_mov_b32 v{t+1}, s57"); e(f"v_mul_f32 v{t+1}, {hex(f2u(1/640))}, v{t+1}")
            s.rnd2(t, t+1, t+2)
            e(f"v_add_f32 v{t+1}, {hex(f2u(1e-5))}, v{t+1}"); e(f"v_mov_b32 v{t+3}, 0"); s.rnd2(t+1, t+3, t+2)
            e(f"v_sqrt_f32 v{t+1}, v{t+1}"); e("s_nop 0"); s.rnd2(t+1, t+3, t+2)
            e(f"v_rcp_f32 v{t+1}, v{t+1}"); e("s_nop 0")
            for j in range(5):
                a, c = X + 4*j + 2*b, X + 4*j + 2*b + 1
                e(f"v_sub_f32 v{a}, v{a}, v{t}"); e(f"v_sub_f32 v{c}, v{c}, v{t}"); s.rnd2(a, c, t+2)
                e(f"v_mul_f32 v{a}, v{a}, v{t+1}"); e(f"v_mul_f32 v{c}, v{c}, v{t+1}"); s.rnd2(a, c, t+2)
                sg, cg = SG + 4*j, CG + 4*j
                for (dst, g) in ((t+4, cg), (t+6, sg)):
                    if b == 0:
                        e(f"v_lshlrev_b32 v{dst}, 16, v{g}"); e(f"v_lshlrev_b32 v{dst+1}, 16, v{g+2}")
                    else:
                        e(f"v_and_b32 v{dst}, 0xffff0000, v{g}"); e(f"v_and_b32 v{dst+1}, 0xffff0000, v{g+2}")
                e(f"v_add_f32 v{t+4}, 1.0, v{t+4}"); e(f"v_add_f32 v{t+5}, 1.0, v{t+5}"); s.rnd2(t+4, t+5, t+2)
                e(f"v_mul_f32 v{a}, v{a}, v{t+4}"); e(f"v_mul_f32 v{c}, v{c}, v{t+5}"); s.rnd2(a, c, t+2)
                e(f"v_add_f32 v{a}, v{a}, v{t+6}"); e(f"v_add_f32 v{c}, v{c}, v{t+7}")
                e(f"v_cvt_pk_bf16_f32 v{t+2}, v{a}, v{c}")
                e(f"ds_write_b32 v{t+8}, v{t+2} offset:{b*1280 + j*256}")
    def silu(s, x, t):
        e = s.e
        e(f"v_mul_f32 v{t}, {hex(f2u(-math.log2(math.e)))}, v{x}"); e(f"v_exp_f32 v{t}, v{t}"); e("s_nop 0")
        e(f"v_add_f32 v{t}, 1.0, v{t}"); e(f"v_rcp_f32 v{t}, v{t}"); e("s_nop 0"); e(f"v_mul_f32 v{x}, v{x}, v{t}")
    def unit_dma(s, srd, rowb, usreg, lds):
        e = s.e
        e("v_lshrrev_b32 v1, 1, v0"); e(f"v_mul_u32_u24 v2, {rowb}, v1"); e("v_and_b32 v1, 1, v0"); e("v_lshl_add_u32 v2, v1, 4, v2")
        e(f"s_lshl_b32 s52, s{usreg}, 5")
        s.dma(20, 2, srd, 52, 32*rowb, lds)
    def unit_pub(s, acc, usreg, wbase):
        e = s.e
        e(f"v_cvt_pk_bf16_f32 v4, v{acc}, v{acc+1}"); e("v_mov_b32 v5, s30")
        e(f"s_lshl_b32 s52, s{usreg}, 7"); e(f"s_add_u32 s52, s52, {wbase}"); e("v_lshlrev_b32 v1, 3, v0")
        s.lanes16(); e("buffer_store_dwordx2 v[4:5], v1, s[36:39], s52 offen sc1"); s.allx()
    def mod_unit(s, usreg, lds, do_act):
        e = s.e
        s.srd(40, 24, 640*3840*2)
        if do_act:
            s.srd(48, 22, 2560); e("v_lshlrev_b32 v3, 2, v0")
            for b in range(2):
                for j in range(5): e(f"buffer_load_dword v{16+b*5+j}, v3, s[48:51], 0 offen offset:{b*1280+j*256}")
        s.unit_dma(40, 7680, usreg, lds)
        if do_act:
            e("s_waitcnt vmcnt(20)"); e(f"v_add_u32 v3, {L_ACT}, v3")
            for q in range(10):
                s.unpack(8, 9, 16+q); s.silu(8, 10); s.silu(9, 11)
                e("v_cvt_pk_bf16_f32 v8, v8, v9"); e(f"ds_write_b32 v3, v8 offset:{(q//5)*1280+(q%5)*256}")
        s.gemv_addr(6, 7, L_ACT, 1280, lds, 32, 1)
        e("s_waitcnt vmcnt(0) lgkmcnt(0)")
        s.gemv(12, 6, 7, 32, 20, 16)
        s.unit_pub(12, usreg, W_MOD)
    def slab64_dma(s, srd, rowb, lds):
        e = s.e
        e("v_lshrrev_b32 v1, 3, v0"); e(f"v_mul_u32_u24 v2, {rowb}, v1"); e("v_and_b32 v1, 7, v0"); e("v_lshl_add_u32 v2, v1, 4, v2")
        s.dma(20, 2, srd, 52, 8*rowb, lds)
    def pub4(s, acc, soff):
        e = s.e
        e("v_lshlrev_b32 v1, 4, v0")
        for q in range(4):
            e(f"v_mov_b32 v{200+4*q}, v{acc+4*q}"); e(f"v_mov_b32 v{201+4*q}, s30"); e(f"v_mov_b32 v{202+4*q}, v{acc+4*q+1}"); e(f"v_mov_b32 v{203+4*q}, s30")
        s.lanes16()
        for q in range(4): e(f"buffer_store_dwordx4 v[{200+4*q}:{203+4*q}], v1, s[36:39], {soff} offen offset:{q*256} sc1")
        s.allx()
    def tagwait(s):
        s.e("s_waitcnt lgkmcnt(0)"); s.e(f"s_add_u32 s30, s30, {hex(TAGC)}")
    def moda_unit(s):
        e = s.e
        s.srd(40, 24, 640*3840*2); s.srd(48, 22, 2560)
        e("s_and_b32 s66, s65, 3"); e("s_lshr_b32 s67, s65, 2")
        e("v_and_b32 v1, 31, v0"); e("v_lshrrev_b32 v3, 5, v0"); e("v_mul_u32_u24 v8, 1280, v3"); e("v_lshl_add_u32 v8, v1, 1, v8")
        e("s_mul_i32 s57, s66, 320")
        for m in range(5): e(f"buffer_load_ushort v{16+m}, v8, s[48:51], s57 offen offset:{m*64}")
        e(f"s_mul_i32 s52, s66, {160*7680}"); e("s_lshl_b32 s57, s67, 7"); e("s_add_u32 s52, s52, s57")
        s.slab64_dma(40, 7680, L_MODS)
        s.tagwait()
        e("v_mul_u32_u24 v8, 320, v3"); e("v_and_b32 v1, 31, v0"); e("v_lshl_add_u32 v8, v1, 1, v8"); e(f"v_add_u32 v8, {L_ACTA}, v8")
        e("s_waitcnt vmcnt(20)")
        for m in range(5):
            e(f"v_lshlrev_b32 v{16+m}, 16, v{16+m}"); s.silu(16+m, 10)
            e(f"v_cvt_pk_bf16_f32 v{16+m}, v{16+m}, v{16+m}"); e(f"ds_write_b16 v8, v{16+m} offset:{m*64}")
        s.gemv_addr(6, 7, L_ACTA, 320, L_MODS, 128, 1)
        e("s_waitcnt vmcnt(0) lgkmcnt(0)")
        s.stamp(4)
        s.gemv4(24, 6, 7, 128, 5, 40)
        e("s_mul_i32 s57, s66, 20480"); e("s_lshl_b32 s58, s67, 10"); e("s_add_u32 s57, s57, s58"); e(f"s_add_u32 s57, s57, {W_MODP}")
        s.pub4(24, "s57")
    def q_unit2(s):
        e = s.e
        s.srd(48, 4, 2560)
        e("s_lshr_b32 s66, s33, 1")
        e("v_lshlrev_b32 v3, 2, v0")
        for b in range(2):
            for j in range(5): e(f"buffer_load_dword v{16+b*5+j}, v3, s[48:51], 0 offen offset:{b*1280+j*256}")
        e("v_lshlrev_b32 v8, 1, v0"); e("s_mul_i32 s57, s66, 320")
        for b in range(2):
            for m in range(3):
                if m == 2: e("s_mov_b32 exec_hi, 0")
                e(f"buffer_load_ushort v{26+2*m+b}, v8, s[48:51], s57 offen offset:{b*1280+m*128}")
                if m == 2: s.allx()
        s.wq_dma()
        s.tagwait()
        e("s_cmp_lg_u32 s66, 0"); e("s_cbranch_scc1 L_noinit")
        e("s_lshl_b32 s57, s32, 13"); e(f"s_add_u32 s57, s57, {W_CNT}")
        e(f"v_mov_b32 v4, {16*(1+s.o.get('xl', 0)+(1 if s.o.get('axt') else 0)) if s.o.get('xt', 1) else 0}"); e("v_mov_b32 v1, 0")
        e("s_mov_b64 exec, 1"); e("buffer_store_dword v4, v1, s[36:39], s57 offen sc1"); s.allx()
        e("s_waitcnt vmcnt(21)"); e("s_branch L_init2")
        s.lab("L_noinit"); e("s_waitcnt vmcnt(20)"); s.lab("L_init2")
        X = 32
        for b in range(2):
            for j in range(5): s.unpack(X+4*j+2*b, X+4*j+2*b+1, 16+b*5+j)
        for q in range(6): e(f"v_lshlrev_b32 v{26+q}, 16, v{26+q}")
        t = 52
        for b in range(2):
            xs = [X + 4*j + 2*b + q for j in range(5) for q in range(2)]
            e(f"v_add_f32 v{t}, v{xs[0]}, v{xs[1]}")
            for r in xs[2:]: e(f"v_add_f32 v{t}, v{t}, v{r}")
            s.wred("v_add_f32", t+1, t)
            e("s_nop 0"); e(f"v_readlane_b32 s57, v{t+1}, 63"); e("s_nop 1")
            e(f"v_mov_b32 v{t}, s57"); e(f"v_mul_f32 v{t}, {hex(f2u(1/640))}, v{t}")
            e(f"v_sub_f32 v{t+2}, v{xs[0]}, v{t}"); e(f"v_mul_f32 v{t+3}, v{t+2}, v{t+2}")
            for r in xs[1:]:
                e(f"v_sub_f32 v{t+2}, v{r}, v{t}"); e(f"v_fma_f32 v{t+3}, v{t+2}, v{t+2}, v{t+3}")
            s.wred("v_add_f32", t+1, t+3)
            e("s_nop 0"); e(f"v_readlane_b32 s57, v{t+1}, 63"); e("s_nop 1")
            e(f"v_mov_b32 v{t+1}, s57"); e(f"v_mul_f32 v{t+1}, {hex(f2u(1/640))}, v{t+1}")
            s.rnd2(t, t+1, t+2)
            e(f"v_add_f32 v{t+1}, {hex(f2u(1e-5))}, v{t+1}"); e(f"v_mov_b32 v{t+3}, 0"); s.rnd2(t+1, t+3, t+2)
            e(f"v_sqrt_f32 v{t+1}, v{t+1}"); e("s_nop 0"); s.rnd2(t+1, t+3, t+2)
            e(f"v_rcp_f32 v{t+1}, v{t+1}"); e("s_nop 0")
            for m in range(3):
                a = 26+2*m+b
                e(f"v_sub_f32 v{a}, v{a}, v{t}"); s.rnd2(a, t+3, t+2)
                e(f"v_mul_f32 v{a}, v{a}, v{t+1}"); s.rnd2(a, t+3, t+2)
        e("v_lshlrev_b32 v9, 4, v0"); e("s_mul_i32 s57, s66, 2560"); e(f"s_add_u32 s57, s57, {W_MODP}")
        for w in range(2):
            for k in range(4): e(f"s_add_u32 s{68+w*4+k}, s57, {w*10240 + k*20480}")
        loads = []; ex = {}
        G0 = 64
        for w in range(2):
            for k in range(4):
                for m in range(3):
                    d = G0 + ((w*4+k)*3+m)*4
                    if m == 2:
                        ex[len(loads)] = 1
                        e(f"v_mov_b32 v{d}, 0"); e(f"v_mov_b32 v{d+1}, s30"); e(f"v_mov_b32 v{d+2}, 0"); e(f"v_mov_b32 v{d+3}, s30")
                    loads.append((d, 9, f"s{68+w*4+k}", m*1024))
        e("s_waitcnt vmcnt(0)")
        if s.sw == 5: s.stamp(1)
        s.poll([loads[21]], 10); s.poll(loads, 10, execs=ex)
        if s.sw == 5: s.stamp(4)
        e("v_lshlrev_b32 v8, 1, v0"); e(f"v_add_u32 v8, {L_H}, v8")
        for m in range(3):
            for w in range(2):
                d = [G0 + ((w*4+k)*3+m)*4 for k in range(4)]
                for b in range(2):
                    e(f"v_add_f32 v{d[0]+2*b}, v{d[0]+2*b}, v{d[1]+2*b}"); e(f"v_add_f32 v{d[2]+2*b}, v{d[2]+2*b}, v{d[3]+2*b}")
                for b in range(2): e(f"v_add_f32 v{d[0]+2*b}, v{d[0]+2*b}, v{d[2]+2*b}")
                s.rnd2(d[0], d[0]+2, 52)
            sa = G0 + m*4; ca = G0 + (12+m)*4
            e(f"v_add_f32 v{ca}, 1.0, v{ca}"); e(f"v_add_f32 v{ca+2}, 1.0, v{ca+2}"); s.rnd2(ca, ca+2, 52)
            a = 26+2*m
            e(f"v_mul_f32 v{a}, v{a}, v{ca}"); e(f"v_mul_f32 v{a+1}, v{a+1}, v{ca+2}"); s.rnd2(a, a+1, 52)
            e(f"v_add_f32 v{a}, v{a}, v{sa}"); e(f"v_add_f32 v{a+1}, v{a+1}, v{sa+2}")
            e(f"v_cvt_pk_bf16_f32 v{a}, v{a}, v{a+1}")
            if m == 2: e("s_mov_b32 exec_hi, 0")
            e(f"ds_write_b16 v8, v{a} offset:{m*128}"); e(f"ds_write_b16_d16_hi v8, v{a} offset:{320+m*128}")
        s.allx()
        s.q_gemv_pub()
        s.q_gather(bar2=bool(s.o.get("bp")))
    def q_gemv_pub(s):
        e = s.e
        e("s_sub_u32 s67, s31, 5"); e("s_lshr_b32 s66, s33, 1")
        e("s_mul_i32 s57, s67, 20480"); e(f"s_add_u32 s57, s57, {L_WQ}")
        s.gemv_addr(6, 7, L_H, 320, "s57", 128, 1)
        e("s_lshl_b32 s57, s32, 13"); e("s_lshl_b32 s58, s66, 11"); e("s_add_u32 s57, s57, s58"); e("s_lshl_b32 s58, s67, 10"); e("s_add_u32 s57, s57, s58")
        e(f"s_add_u32 s59, s57, {W_QP}")
        e("s_waitcnt vmcnt(0) lgkmcnt(0)")
        e("s_barrier")
        s.gemv4(24, 6, 7, 128, 5, 64)
        s.pub4(24, "s59")
        if s.sw == 5: s.stamp(5)
        e("s_barrier")
    def wq_dma(s):
        e = s.e
        s.srd(40, 10, 640*4096*2)
        e("s_sub_u32 s67, s31, 5"); e("s_lshr_b32 s66, s33, 1")
        e(f"s_mul_i32 s52, s66, {160*8192}"); e("s_lshl_b32 s57, s32, 8"); e("s_add_u32 s52, s52, s57"); e("s_lshl_b32 s57, s67, 7"); e("s_add_u32 s52, s52, s57")
        e("v_lshrrev_b32 v1, 3, v0"); e("v_mul_u32_u24 v2, 8192, v1"); e("v_and_b32 v1, 7, v0"); e("v_lshl_add_u32 v2, v1, 4, v2")
        e("s_mul_i32 s53, s67, 20480"); e(f"s_add_u32 s53, s53, {L_WQ}")
        for i in range(20):
            e("s_mov_b32 m0, s53"); e("s_add_u32 s53, s53, 1024")
            e("buffer_load_dwordx4 v2, s[40:43], s52 offen nt lds")
            e(f"s_add_u32 s52, s52, {8*8192}")
    def q_gather(s, bar2=False, rounds=None):
        e = s.e
        e("v_lshlrev_b32 v9, 4, v0")
        e("s_lshl_b32 s57, s32, 13"); e(f"s_add_u32 s57, s57, {W_QP}"); e("s_add_u32 s58, s57, 4096")
        loads = [(64+(k*2+hf)*4, 9, "s57" if k < 2 else "s58", (k % 2)*2048 + hf*1024) for k in range(4) for hf in range(2)]
        s.poll(loads, 10, bar2=bar2, rounds=rounds)
        if s.sw == 5: s.stamp(6)
        e("v_lshlrev_b32 v3, 1, v0"); e(f"v_add_u32 v3, {L_Q}, v3")
        for hf in range(2):
            d = [64+(k*2+hf)*4 for k in range(4)]
            for b in range(2):
                e(f"v_add_f32 v{d[0]+2*b}, v{d[0]+2*b}, v{d[1]+2*b}"); e(f"v_add_f32 v{d[2]+2*b}, v{d[2]+2*b}, v{d[3]+2*b}")
            for b in range(2): e(f"v_add_f32 v{d[0]+2*b}, v{d[0]+2*b}, v{d[2]+2*b}")
            e(f"v_cvt_pk_bf16_f32 v{d[0]}, v{d[0]}, v{d[0]+2}")
            e(f"ds_write_b16 v3, v{d[0]} offset:{hf*128}"); e(f"ds_write_b16_d16_hi v3, v{d[0]} offset:{256+hf*128}")
        e("s_waitcnt lgkmcnt(0)")
    def combine(s, base, np_):
        e = s.e
        e("s_mul_i32 s58, s57, 544"); e(f"s_add_u32 s58, s58, {base}")
        e("v_lshlrev_b32 v1, 3, v0"); e("v_add_u32 v1, s58, v1"); e("v_mov_b32 v2, s58")
        for p in range(np_):
            e(f"ds_read_b64 v[{32+2*p}:{33+2*p}], v1 offset:{p*1088}")
            e(f"ds_read_b64 v[{64+2*p}:{65+2*p}], v2 offset:{p*1088+512}")
        e("s_waitcnt lgkmcnt(0)")
        e("v_max_f32 v18, v64, v66")
        for p in range(2, np_): e(f"v_max_f32 v18, v18, v{64+2*p}")
        e(f"s_mov_b32 s55, {hex(C_SM)}")
        for p in range(np_):
            e(f"v_sub_f32 v{64+2*p}, v{64+2*p}, v18"); e(f"v_mul_f32 v{64+2*p}, s55, v{64+2*p}"); e(f"v_exp_f32 v{64+2*p}, v{64+2*p}")
        e("s_nop 0")
        e("v_mul_f32 v16, v32, v64"); e("v_mul_f32 v17, v33, v64"); e("v_mul_f32 v19, v65, v64")
        for p in range(1, np_):
            e(f"v_fma_f32 v16, v{32+2*p}, v{64+2*p}, v16"); e(f"v_fma_f32 v17, v{33+2*p}, v{64+2*p}, v17"); e(f"v_fma_f32 v19, v{65+2*p}, v{64+2*p}, v19")
    def pub_tile(s, acc, soff):
        e = s.e
        e(f"v_mov_b32 v4, v{acc}"); e("v_mov_b32 v5, s30"); e(f"v_mov_b32 v6, v{acc+1}"); e("v_mov_b32 v7, s30")
        s.lanes16(); e(f"buffer_store_dwordx4 v[4:7], v1, s[36:39], {soff} offen sc1"); s.allx(); e("s_nop 1")
    def xrow_sum(s, r, t):
        e = s.e
        e(f"ds_bpermute_b32 v{t+2}, v{t}, v{r}"); e("s_waitcnt lgkmcnt(0)"); e(f"v_add_f32 v{r}, v{r}, v{t+2}")
        e(f"ds_bpermute_b32 v{t+2}, v{t+1}, v{r}"); e("s_waitcnt lgkmcnt(0)"); e(f"v_add_f32 v{r}, v{r}, v{t+2}")

    def roles(s):
        e = s.e
        e("s_mov_b32 s34, 0"); e("s_mov_b32 s35, 0")
        e("s_cmp_lt_u32 s33, 5"); e("s_cbranch_scc1 L_roled")
        e("s_mov_b32 s34, 1"); e("s_mov_b32 s35, s32")
        e("s_cmp_eq_u32 s33, 5"); e("s_cbranch_scc1 L_roled")
        e("s_mov_b32 s34, 2")
        e("s_cmp_eq_u32 s33, 7"); e("s_cbranch_scc1 L_roled")
        e("s_mov_b32 s34, 1"); e("s_add_u32 s35, s32, 32")
        e("s_cmp_lt_u32 s32, 22"); e("s_cbranch_scc1 L_roled")
        e("s_mov_b32 s34, 2"); e("s_add_u32 s35, s32, 10")
        e("s_cmp_lt_u32 s32, 30"); e("s_cbranch_scc1 L_roled")
        e("s_mov_b32 s34, 3")
        s.lab("L_roled")

    def helpers(s):
        e = s.e
        e("s_cmp_eq_u32 s95, 1"); e("s_cbranch_scc1 L_hA")
        s.tagwait()
        if s.o.get("pil"):
            N = 4*s.o["xl"]
            e("s_cmp_eq_u32 s31, 5"); e("s_cbranch_scc1 L_hp5")
            e("s_barrier"); e("s_barrier"); e("s_barrier"); e("s_barrier")
            e("s_branch L_nob1b")
            s.lab("L_hp5")
            s.lds_tile_setup()
            e("s_barrier")
            s.q_gather(rounds=(s.o["pil"], N, s.lds_tile))
            e("s_barrier")
            s.lab("L_hp5r")
            e(f"s_cmp_ge_u32 s65, {N}"); e("s_cbranch_scc1 L_hp5d")
            s.lds_tile()
            e("s_branch L_hp5r")
            s.lab("L_hp5d")
            e("s_waitcnt vmcnt(0)")
            e("s_barrier"); e("s_barrier")
            e("s_branch L_nob1b")
        else:
          e("s_cmp_eq_u32 s31, 5"); e("s_cbranch_scc0 L_hb1")
          s.q_gather()
          e("s_branch L_hb1")
        s.lab("L_hA")
        e("s_cmp_eq_u32 s31, 5"); e("s_cbranch_scc1 L_hq")
        e("s_cmp_eq_u32 s31, 6"); e("s_cbranch_scc1 L_hq6")
        e("s_cmp_eq_u32 s31, 4"); e("s_cbranch_scc0 L_hb0")
        e("s_cmp_lt_u32 s96, 80"); e("s_cbranch_scc0 L_hb0")
        e("s_mov_b32 s65, s96")
        s.moda_unit()
        s.stamp(1)
        e("s_branch L_hba")
        s.lab("L_hq"); s.q_unit2(); e("s_branch L_hb1")
        s.lab("L_hq6"); s.wq_dma(); s.tagwait(); s.q_gemv_pub()
        if s.o.get("bp"): e("s_barrier")
        e("s_branch L_hb1")
        s.lab("L_hb0"); s.tagwait()
        s.lab("L_hba"); e("s_barrier"); e("s_barrier")
        if s.o.get("bp"): e("s_barrier")
        s.lab("L_hb1")
        e("s_barrier")
        s.stamp(2)
        if s.o.get("xl"):
            e("s_cmp_eq_u32 s95, 1"); e("s_cbranch_scc1 L_nob1b"); e("s_barrier"); s.lab("L_nob1b")
        e("s_cmp_eq_u32 s31, 4"); e("s_cbranch_scc1 L_h4")
        if s.o.get("notail"): e("s_cmp_eq_u32 s34, 0"); e("s_cbranch_scc0 L_hb2"); e("s_cmp_eq_u32 s31, 6"); e("s_cbranch_scc0 L_hb2")
        e("s_cmp_eq_u32 s34, 1"); e("s_cbranch_scc1 L_hffn")
        e("s_cmp_eq_u32 s34, 0"); e("s_cbranch_scc0 L_hb2")
        e("s_cmp_eq_u32 s31, 7"); e("s_cbranch_scc1 L_hwo")
        e("s_cmp_eq_u32 s31, 6"); e("s_cbranch_scc0 L_hb2")
        e("s_lshl_b32 s65, s33, 5"); e("s_add_u32 s65, s65, s32"); e("s_add_u32 s65, s65, 80")
        s.mod_unit(65, L_MOD2, True)
        e("s_branch L_hb2")
        s.lab("L_hwo")
        s.srd(40, 12, 4096*640*2)
        e("v_lshrrev_b32 v1, 4, v0"); e("v_mul_u32_u24 v2, 1280, v1"); e("v_and_b32 v1, 15, v0"); e("v_lshl_add_u32 v2, v1, 4, v2")
        e("s_mul_i32 s52, s32, 163840"); e("s_lshl_b32 s57, s33, 8"); e("s_add_u32 s52, s52, s57")
        s.dma(32, 2, 40, 52, 4*1280, L_WO, nt=True)
        e("s_branch L_hb2")
        s.lab("L_hffn")
        e("s_cmp_eq_u32 s31, 7"); e("s_cbranch_scc1 L_hdown")
        e("s_cmp_eq_u32 s31, 5"); e("s_cselect_b32 s40, s16, s18"); e("s_cselect_b32 s41, s17, s19")
        e(f"s_mov_b32 s53, {L_UP}"); e(f"s_cselect_b32 s53, {L_GATE}, s53")
        e("s_and_b32 s41, s41, 0xffff"); e(f"s_mov_b32 s42, {640*1728*2}"); e("s_mov_b32 s43, 0x20000")
        e("v_lshrrev_b32 v1, 2, v0"); e("v_mul_u32_u24 v2, 3456, v1"); e("v_and_b32 v1, 3, v0"); e("v_lshl_add_u32 v2, v1, 4, v2")
        e("s_lshl_b32 s52, s35, 6")
        for i in range(40):
            e("s_mov_b32 m0, s53")
            e("s_nop 0")
            e("buffer_load_dwordx4 v2, s[40:43], s52 offen" + " nt" + " lds")
            e("s_add_u32 s53, s53, 1024"); e(f"s_add_u32 s52, s52, {16*3456}")
        e("s_cmp_eq_u32 s31, 5"); e("s_cbranch_scc1 L_h4f")
        e("s_branch L_hb2")
        s.lab("L_hdown")
        s.srd(40, 20, 1728*640*2)
        e("v_lshlrev_b32 v2, 4, v0"); e("s_mul_i32 s52, s35, 40960")
        s.dma(40, 2, 40, 52, 1024, L_DOWN, nt=True)
        e("s_branch L_hb2")
        s.lab("L_h4")
        e("s_cmp_eq_u32 s34, 1"); e("s_cbranch_scc1 L_h4f")
        e("s_cmp_eq_u32 s34, 2"); e("s_cbranch_scc0 L_hb2")
        s.srd(48, 4, 2560)
        e("v_and_b32 v1, 15, v0"); e("v_lshlrev_b32 v9, 3, v1"); e("v_lshlrev_b32 v8, 1, v1")
        e("v_bfe_u32 v6, v0, 4, 1"); e("v_mul_u32_u24 v7, 1280, v6"); e("v_add_u32 v8, v8, v7"); e("v_lshlrev_b32 v6, 4, v6")
        e("s_lshl_b32 s57, s35, 5")
        e("buffer_load_ushort v204, v8, s[48:51], s57 offen")
        e("s_lshl_b32 s57, s35, 7"); e(f"s_add_u32 s58, s57, {W_MOD + 1280*8}"); e(f"s_add_u32 s57, s57, {W_MOD + 3200*8}")
        s.poll([(200, 9, "s58", 0), (202, 9, "s57", 0)], 10, wide=2)
        e("v_lshlrev_b32 v204, 16, v204")
        for r in (200, 202): e(f"v_lshrrev_b32 v{r}, v6, v{r}"); e(f"v_lshlrev_b32 v{r}, 16, v{r}")
        e("s_branch L_hb2")
        s.lab("L_h4f")
        e("v_lshlrev_b32 v9, 4, v0")
        for j in range(5): e(f"s_mov_b32 s{68+j}, {W_MOD + 1920*8 + j*1024}")
        for j in range(5): e(f"s_mov_b32 s{74+j}, {W_MOD + 2560*8 + j*1024}")
        loads = [(160+4*j, 9, f"s{68+j}", 0) for j in range(5)] + [(180+4*j, 9, f"s{74+j}", 0) for j in range(5)]
        s.poll(loads[9:], 10); s.poll(loads, 10)
        e("s_mov_b32 s57, 0x01000c0c"); e("s_cmp_eq_u32 s31, 5"); e("s_cselect_b32 s57, 0x03020c0c, s57")
        for j in range(5):
            for q in range(2):
                e(f"v_perm_b32 v{128+2*j+q}, v{160+4*j+2*q}, v{160+4*j+2*q}, s57")
                e(f"v_perm_b32 v{140+2*j+q}, v{180+4*j+2*q}, v{180+4*j+2*q}, s57")
                e(f"v_add_f32 v{140+2*j+q}, 1.0, v{140+2*j+q}")
            s.rnd2(140+2*j, 141+2*j, 10)
        s.lab("L_hb2")
        e("s_waitcnt vmcnt(0) lgkmcnt(0)")
        e("s_barrier")

    def swap(s, n, a, b):
        s.e("s_nop 1"); s.e(f"v_permlane{n}_swap_b32 v{a}, v{b}"); s.e("s_nop 1")
    def rnd1(s, a, t):
        s.e(f"v_cvt_pk_bf16_f32 v{t}, v{a}, v{a}"); s.e(f"v_lshlrev_b32 v{a}, 16, v{t}")
    def lanes32(s): s.e("s_mov_b32 exec_lo, -1"); s.e("s_mov_b32 exec_hi, 0")
    def tail(s):
        e = s.e
        L_GU2 = L_ST; L_AC2 = L_ST + 2048
        s.stamp(3)
        e("s_cmp_lt_u32 s31, 2"); e("s_cbranch_scc0 L_t1d")
        e("s_mov_b32 s57, s31")
        s.combine(L_ST, 4)
        e(f"v_max_f32 v20, {hex(f2u(1e-30))}, v19"); e("v_rcp_f32 v20, v20")
        e("v_lshrrev_b32 v1, 3, v0"); e("v_lshlrev_b32 v1, 10, v1"); e("v_and_b32 v2, 7, v0"); e("v_lshl_add_u32 v1, v2, 3, v1")
        e("v_mul_f32 v16, v16, v20"); e("v_mul_f32 v17, v17, v20"); e("v_cvt_pk_bf16_f32 v4, v16, v17"); e("v_mov_b32 v5, s30")
        e("s_lshl_b32 s58, s33, 1"); e("s_add_u32 s58, s58, s31")
        e("s_lshl_b32 s57, s32, 13"); e("s_lshl_b32 s59, s58, 6"); e("s_add_u32 s57, s57, s59"); e(f"s_add_u32 s57, s57, {W_PA}")
        e("buffer_store_dwordx2 v[4:5], v1, s[36:39], s57 offen sc1")
        e("s_lshl_b32 s57, s32, 8"); e("s_lshl_b32 s59, s58, 4"); e("s_add_u32 s57, s57, s59"); e(f"s_add_u32 s57, s57, {W_PM}")
        e("v_mov_b32 v8, v18"); e("v_mov_b32 v9, s30"); e("v_mov_b32 v10, v19"); e("v_mov_b32 v11, s30")
        e("s_mov_b64 exec, 1"); e("buffer_store_dwordx4 v[8:11], v1, s[36:39], s57 offen sc1"); s.allx()
        s.lab("L_t1d")
        e("s_cmp_eq_u32 s34, 0"); e("s_cbranch_scc1 L_t2")
        e("s_cmp_eq_u32 s34, 1"); e("s_cbranch_scc1 L_t4")
        e("s_cmp_eq_u32 s34, 2"); e("s_cbranch_scc0 L_fin")
        e("s_cmp_eq_u32 s31, 4"); e("s_cbranch_scc0 L_fin")
        e("v_lshlrev_b32 v9, 3, v0"); e("v_lshlrev_b32 v8, 4, v0")
        e("v_bfe_u32 v6, v0, 4, 1"); e("v_and_b32 v1, 15, v0")
        e("v_mul_u32_u24 v11, 2560, v6"); e("v_lshrrev_b32 v7, 1, v1"); e("v_lshl_add_u32 v11, v7, 3, v11")
        e("v_mul_u32_u24 v13, 1280, v6"); e("v_lshl_add_u32 v13, v1, 1, v13")
        e("v_mov_b32 v5, s30")
        s.srd(48, 26, 2560)
        e("s_lshl_b32 s59, s35, 6"); e(f"s_add_u32 s59, s59, {W_X1}")
        e("s_mul_i32 s66, s35, 14336"); e(f"s_add_u32 s66, s66, {W_D}")
        for q in range(1, 4): e(f"s_add_u32 s{66+q}, s66, {4096*q}")
        e("s_lshl_b32 s70, s35, 5")
        e("v_mov_b32 v148, 0"); e("v_mov_b32 v149, 0"); e("v_mov_b32 v150, s30")
        e("s_lshl_b32 s57, s35, 13"); e(f"s_add_u32 s57, s57, {W_Y}"); e("s_add_u32 s58, s57, 4096")
        def c3(g):
            b = 32 + 32*g
            e(f"v_add_f32 v16, v{b}, v{b+2}"); e(f"v_add_f32 v17, v{b+4}, v{b+6}")
            for i in range(4, 16, 2): e(f"v_add_f32 v16, v16, v{b+2*i}"); e(f"v_add_f32 v17, v17, v{b+2+2*i}")
        s.ppoll([[(32+32*g+2*i, 9, "s57" if i < 8 else "s58", (i % 8)*512, 2) for i in range(16)] for g in range(s.o.get("g3", 1))], 14, c3)
        s.stamp(4)
        e("v_add_f32 v16, v16, v17"); e("s_nop 0"); e("v_mov_b32 v17, v16")
        s.swap(32, 16, 17); e("v_add_f32 v16, v16, v17")
        s.rnd1(16, 18); e("v_mul_f32 v16, v16, v200"); s.rnd1(16, 18)
        e("v_add_f32 v204, v204, v16"); s.rnd1(204, 18)
        e("s_nop 1"); e("v_mov_b32_dpp v18, v204 quad_perm:[1,0,3,2] row_mask:0xf bank_mask:0xf")
        e("v_cvt_pk_bf16_f32 v4, v204, v18")
        e("s_mov_b32 exec_lo, 0x55555555"); e("s_mov_b32 exec_hi, 0")
        e("buffer_store_dwordx2 v[4:5], v11, s[36:39], s59 offen sc1"); s.allx()
        s.stamp(5)
        def c5(g):
            b = 96 + 56*g if g == 0 else 20
            b = (96, 206)[g] if False else (96, 20)[g]
            e(f"v_add_f32 v16, v{b}, v{b+4}"); e(f"v_add_f32 v17, v{b+1}, v{b+5}")
            for i in range(2, 14): e(f"v_add_f32 v16, v16, v{b+4*i}"); e(f"v_add_f32 v17, v17, v{b+1+4*i}")
        e("s_waitcnt vmcnt(0)")
        e("v_mov_b32 v72, 0"); e("v_mov_b32 v73, 0"); e("v_mov_b32 v74, s30")
        s.ppoll([[((96, 20)[g]+4*i, 8, f"s{66 + i//4}", (i % 4)*1024, 3) for i in range(14)] for g in range(s.o.get("g5", 1))], 14, c5, execs={13: 1})
        s.stamp(6)
        s.swap(16, 16, 17); e("v_add_f32 v16, v16, v17"); e("s_nop 0"); e("v_mov_b32 v17, v16")
        s.swap(32, 16, 17); e("v_add_f32 v16, v16, v17")
        s.rnd1(16, 18); e("v_mul_f32 v16, v16, v202"); s.rnd1(16, 18)
        e("v_add_f32 v16, v204, v16"); e("v_cvt_pk_bf16_f32 v4, v16, v16")
        s.lanes32(); e("buffer_store_short v4, v13, s[48:51], s70 offen"); s.allx()
        e("s_cmp_eq_u32 s35, 0"); e("s_cbranch_scc0 L_fin")
        e("v_mov_b32 v1, 0"); e("v_mov_b32 v4, s30"); e("s_mov_b64 exec, 1")
        e("buffer_store_dword v4, v1, s[36:39], 0 offen sc1"); s.allx()
        e("s_branch L_fin")
        s.lab("L_t2")
        e("s_lshl_b32 s57, s31, 5"); e(f"s_add_u32 s57, s57, {L_WO}")
        s.gemv_addr(2, 3, 0, 0, "s57", 256, 1)
        for st in range(4):
            e(f"ds_read_b64_tr_b16 v[{40+4*st}:{41+4*st}], v3 offset:{st*8192}")
            e(f"ds_read_b64_tr_b16 v[{42+4*st}:{43+4*st}], v3 offset:{st*8192 + 1024}")
        e("v_and_b32 v1, 15, v0"); e("v_mul_u32_u24 v2, 272, v1"); e("v_lshrrev_b32 v7, 4, v0"); e("v_lshl_add_u32 v2, v7, 4, v2")
        e("v_lshlrev_b32 v7, 4, v7"); e(f"v_add_u32 v7, {L_W2}, v7")
        e("v_lshlrev_b32 v8, 4, v1"); e("v_lshlrev_b32 v10, 2, v1"); e(f"v_add_u32 v10, {L_W2}, v10")
        e("v_lshrrev_b32 v6, 2, v0"); e("v_mul_u32_u24 v6, 272, v6"); e("v_and_b32 v1, 3, v0"); e("v_lshl_add_u32 v6, v1, 3, v6")
        e("s_lshl_b32 s57, s31, 5"); e("v_add_u32 v6, s57, v6")
        e("v_lshlrev_b32 v9, 4, v0"); e("v_lshlrev_b32 v11, 3, v0"); e("v_mov_b32 v5, s30")
        e("s_lshl_b32 s59, s33, 3"); e("s_add_u32 s59, s59, s31"); e("s_lshl_b32 s59, s59, 13")
        e("s_lshl_b32 s58, s32, 8"); e("s_add_u32 s59, s59, s58"); e(f"s_add_u32 s59, s59, {W_Y}")
        e(f"s_add_u32 s58, s58, {W_PM}")
        e("s_lshl_b32 s57, s32, 13"); e("s_lshl_b32 s66, s31, 10"); e("s_add_u32 s57, s57, s66"); e(f"s_add_u32 s57, s57, {W_PA}")
        e("s_cmp_eq_u32 s31, 7"); e("s_cbranch_scc1 L_t2w")
        s.ppoll([[(76+4*g, 9, "s57", 0, 4)] for g in range(s.o.get("g2", 1))], 14, lambda g: e(f"ds_write2_b32 v6, v{76+4*g}, v{78+4*g} offset0:0 offset1:1"))
        e("s_branch L_t2b")
        s.lab("L_t2w")
        def c2(g):
            e(f"ds_write2_b32 v6, v{76+8*g}, v{78+8*g} offset0:0 offset1:1"); e(f"v_mov_b32 v36, v{80+8*g}"); e(f"v_mov_b32 v38, v{82+8*g}")
        s.ppoll([[(76+8*g, 9, "s57", 0, 4), (80+8*g, 8, "s58", 0, 4)] for g in range(s.o.get("g2", 1))], 14, c2)
        e("s_nop 1")
        D = "row_mask:0xf bank_mask:0xf"
        e(f"v_max_f32_dpp v20, v36, v36 row_ror:2 {D}")
        for r in (4, 8): e("s_nop 1"); e(f"v_max_f32_dpp v20, v20, v20 row_ror:{r} {D}")
        e(f"s_mov_b32 s55, {hex(C_SM)}")
        e("v_sub_f32 v21, v36, v20"); e("v_mul_f32 v21, s55, v21"); e("v_exp_f32 v21, v21"); e("s_nop 0"); e("v_mul_f32 v21, v21, v38")
        e("s_nop 1"); e(f"v_add_f32_dpp v22, v21, v21 row_ror:2 {D}")
        for r in (4, 8): e("s_nop 1"); e(f"v_add_f32_dpp v22, v22, v22 row_ror:{r} {D}")
        e("v_rcp_f32 v22, v22"); e("s_nop 0"); e("v_mul_f32 v21, v21, v22")
        s.lanes16(); e("ds_write_b32 v10, v21"); s.allx()
        s.lab("L_t2b")
        e("s_waitcnt lgkmcnt(0)"); e("s_barrier")
        s.stamp(4)
        for st in range(4): e(f"ds_read_b128 v[{56+4*st}:{59+4*st}], v2 offset:{st*64}")
        e("ds_read_b128 v[72:75], v7")
        for st in range(4):
            e(f"s_waitcnt lgkmcnt({4-st})")
            e(f"v_mfma_f32_16x16x32_bf16 v[12:15], v[{56+4*st}:{59+4*st}], v[{40+4*st}:{43+4*st}], " + ("0" if st == 0 else "v[12:15]"))
        e("s_waitcnt lgkmcnt(0)"); e("s_nop 7")
        e("v_mul_f32 v16, v12, v72"); e("v_mul_f32 v17, v13, v73"); e("v_fma_f32 v16, v14, v74, v16"); e("v_fma_f32 v17, v15, v75, v17")
        s.swap(16, 16, 17); e("v_add_f32 v16, v16, v17"); e("s_nop 0"); e("v_mov_b32 v17, v16")
        s.swap(32, 16, 17); e("v_add_f32 v4, v16, v17")
        s.lanes32(); e("buffer_store_dwordx2 v[4:5], v11, s[36:39], s59 offen sc1"); s.allx()
        s.stamp(5)
        e("s_branch L_fin")
        s.lab("L_t4")
        e(f"s_mov_b32 s57, {L_GATE}"); e("s_bitcmp1_b32 s31, 2"); e(f"s_cselect_b32 s57, {L_UP}, s57")
        e("s_and_b32 s66, s31, 3"); e("s_mul_i32 s58, s66, 10240"); e("s_add_u32 s57, s57, s58")
        s.gemv_addr(2, 3, L_H, HROW, "s57", 64, 1)
        for st in range(5):
            for t in range(2):
                r = 64 + (st*2+t)*4
                e(f"ds_read_b64_tr_b16 v[{r}:{r+1}], v3 offset:{st*2048 + t*32}")
                e(f"ds_read_b64_tr_b16 v[{r+2}:{r+3}], v3 offset:{st*2048 + t*32 + 256}")
        e("s_mul_i32 s58, s66, 320"); e("v_add_u32 v2, s58, v2")
        e("s_waitcnt lgkmcnt(0)")
        e("s_mul_i32 s57, s31, 160"); e(f"s_add_u32 s57, s57, {L_DOWN}")
        e("s_lshl_b32 s58, s31, 7"); e(f"s_add_u32 s58, s58, {L_AC2}")
        s.gemv_addr(6, 7, 0, 64, "s57", 1280, 1)
        e("v_add_u32 v6, s58, v6")
        for q in range(5):
            e(f"ds_read_b64_tr_b16 v[{104+4*q}:{105+4*q}], v7 offset:{q*32}")
            e(f"ds_read_b64_tr_b16 v[{106+4*q}:{107+4*q}], v7 offset:{q*32 + 5120}")
        e("v_and_b32 v1, 15, v0"); e("v_lshlrev_b32 v8, 4, v1")
        e("s_lshl_b32 s57, s31, 8"); e(f"s_add_u32 s57, s57, {L_GU2}"); e("v_lshlrev_b32 v10, 3, v1"); e("v_add_u32 v10, s57, v10")
        e("v_lshrrev_b32 v7, 5, v0"); e("v_and_b32 v1, 31, v0")
        e("v_lshlrev_b32 v11, 3, v1"); e("v_lshl_add_u32 v11, v7, 2, v11"); e(f"v_add_u32 v11, {L_GU2}, v11")
        e("v_lshlrev_b32 v7, 6, v7"); e("v_lshl_add_u32 v7, v1, 1, v7"); e("v_add_u32 v7, s58, v7")
        e("s_mul_i32 s66, s31, 5"); e("s_mul_i32 s66, s66, 14336"); e("s_lshl_b32 s57, s35, 8"); e("s_add_u32 s66, s66, s57"); e(f"s_add_u32 s66, s66, {W_D}")
        for q in range(1, 5): e(f"s_add_u32 s{66+q}, s66, {14336*q}")
        e("s_waitcnt lgkmcnt(0)")
        e("s_sub_u32 s57, s31, 4"); e("s_cmp_lt_u32 s57, 2"); e("s_cbranch_scc0 L_t4a")
        e("s_mul_i32 s58, s57, 2560"); e(f"s_add_u32 s58, s58, {W_X1}")
        e(f"s_mul_i32 s57, s57, {HROW}"); e(f"s_add_u32 s57, s57, {L_H}")
        e("v_lshlrev_b32 v9, 3, v0"); e("v_lshlrev_b32 v28, 2, v0"); e("v_add_u32 v28, s57, v28")
        e(f"v_mov_b32 v61, {hex(f2u(1/640))}")
        def c4(g):
            for j in range(5): s.unpack(44+2*j, 45+2*j, 150+10*g+2*j)
        s.ppoll([[(150+10*g+2*j, 9, "s58", j*512, 2) for j in range(5)] for g in range(s.o.get("g4", 1))], 14, c4)
        s.stamp(4)
        e("v_pk_add_f32 v[56:57], v[44:45], v[46:47]"); e("v_pk_mul_f32 v[58:59], v[44:45], v[44:45]")
        e("v_pk_fma_f32 v[58:59], v[46:47], v[46:47], v[58:59]")
        for j in range(2, 5):
            p = f"v[{44+2*j}:{45+2*j}]"
            e(f"v_pk_add_f32 v[56:57], v[56:57], {p}"); e(f"v_pk_fma_f32 v[58:59], {p}, {p}, v[58:59]")
        e("v_add_f32 v56, v56, v57"); e("v_add_f32 v58, v58, v59"); e("s_nop 0")
        e(f"v_add_f32_dpp v57, v56, v56 row_ror:8 {D}"); e(f"v_add_f32_dpp v59, v58, v58 row_ror:8 {D}")
        for m in ("row_ror:4 row_mask:0xf", "row_ror:2 row_mask:0xf", "row_ror:1 row_mask:0xf", "row_bcast:15 row_mask:0xa", "row_bcast:31 row_mask:0xc"):
            e("s_nop 0"); e(f"v_add_f32_dpp v57, v57, v57 {m} bank_mask:0xf"); e(f"v_add_f32_dpp v59, v59, v59 {m} bank_mask:0xf")
        e("s_nop 0"); e("v_readlane_b32 s57, v57, 63"); e("v_readlane_b32 s58, v59, 63"); e("s_nop 1")
        e("v_mul_f32 v60, s57, v61"); e("v_mul_f32 v62, s58, v61")
        e("v_fma_f32 v62, -v60, v60, v62"); e("v_max_f32 v62, 0, v62")
        s.rnd2(60, 62, 29)
        e(f"v_add_f32 v62, {hex(f2u(1e-5))}, v62"); s.rnd1(62, 29)
        e("v_sqrt_f32 v62, v62"); e("s_nop 0"); s.rnd1(62, 29)
        e("v_rcp_f32 v62, v62")
        for j in range(5):
            a = 44+2*j; p = f"v[{a}:{a+1}]"
            e(f"v_pk_add_f32 {p}, {p}, v[60:61] op_sel_hi:[1,0] neg_lo:[0,1] neg_hi:[0,1]"); s.rnd2(a, a+1, 29+(j & 1))
        for j in range(5):
            a = 44+2*j; p = f"v[{a}:{a+1}]"
            e(f"v_pk_mul_f32 {p}, {p}, v[62:63] op_sel_hi:[1,0]"); s.rnd2(a, a+1, 29)
            e(f"v_pk_mul_f32 {p}, {p}, v[{140+2*j}:{141+2*j}]"); s.rnd2(a, a+1, 29)
            e(f"v_pk_add_f32 {p}, {p}, v[{128+2*j}:{129+2*j}]")
            e(f"v_cvt_pk_bf16_f32 v{32+j}, v{a}, v{a+1}")
            e(f"ds_write_b32 v28, v{32+j} offset:{j*256}")
        e("s_waitcnt lgkmcnt(0)")
        s.lab("L_t4a")
        e("s_barrier")
        for st in range(5): e(f"ds_read_b128 v[{32+4*st}:{35+4*st}], v2 offset:{st*64}")
        for st in range(5):
            e(f"s_waitcnt lgkmcnt({4-st})")
            for t in range(2):
                r = 64 + (st*2+t)*4; acc = 12+4*t
                e(f"v_mfma_f32_16x16x32_bf16 v[{acc}:{acc+3}], v[{32+4*st}:{35+4*st}], v[{r}:{r+3}], " + ("0" if st == 0 else f"v[{acc}:{acc+3}]"))
        e("s_nop 7")
        s.lanes16(); e("ds_write_b64 v10, v[12:13]"); e("ds_write_b64 v10, v[16:17] offset:128"); s.allx()
        e("s_waitcnt lgkmcnt(0)"); e("s_barrier")
        for q in range(4): e(f"ds_read2st64_b32 v[{20+2*q}:{21+2*q}], v11 offset0:{2*q} offset1:{2*q+1}")
        e("s_waitcnt lgkmcnt(2)")
        e("v_add_f32 v16, v20, v21"); e("v_add_f32 v18, v22, v23"); e("v_add_f32 v16, v16, v18")
        e("s_waitcnt lgkmcnt(0)")
        e("v_add_f32 v17, v24, v25"); e("v_add_f32 v18, v26, v27"); e("v_add_f32 v17, v17, v18")
        s.rnd2(16, 17, 18)
        s.silu(16, 18); s.rnd1(16, 18)
        e("v_mul_f32 v16, v16, v17"); e("v_cvt_pk_bf16_f32 v16, v16, v16")
        e("ds_write_b16 v7, v16"); e("s_waitcnt lgkmcnt(0)")
        e("ds_read_b128 v[28:31], v6"); e("s_waitcnt lgkmcnt(0)")
        s.stamp(5)
        for q in range(5): e(f"v_mfma_f32_16x16x32_bf16 v[{32+4*q}:{35+4*q}], v[28:31], v[{104+4*q}:{107+4*q}], 0")
        e("s_nop 4")
        for q in range(5): e(f"v_mov_b32 v{34+4*q}, s30")
        s.lanes16()
        for q in range(5): e(f"buffer_store_dwordx3 v[{32+4*q}:{34+4*q}], v8, s[36:39], s{66+q} offen sc1")
        s.allx()
        s.stamp(6)
        s.lab("L_fin")
        if max(s.o.get(k, 1) for k in ("g2", "g3", "g4", "g5")) > 1: e("s_waitcnt vmcnt(0)")

    def gen(s):
        e = s.e
        s.L.append(f"; @launch grid=(256,1,1) block=(512,1,1) lds={LDS}")
        s.L.append('.amdgcn_target "amdgcn-amd-amdhsa--gfx950"')
        s.L += [".text", f".globl {KN}", ".p2align 8", f".type {KN},@function", f"{KN}:"]
        e("s_cmp_ge_u32 s2, 256"); e("s_cbranch_scc1 L_end")
        e("s_load_dwordx16 s[4:19], s[0:1], 0"); e("s_load_dwordx8 s[20:27], s[0:1], 64"); e("s_load_dwordx2 s[28:29], s[0:1], 104")
        e("v_lshrrev_b32 v1, 6, v0"); e("v_and_b32 v0, 63, v0"); e("v_readfirstlane_b32 s31, v1")
        e("s_lshr_b32 s32, s2, 3"); e("s_and_b32 s33, s2, 7")
        s.roles()
        e("s_xor_b32 s95, s32, s33"); e("s_and_b32 s95, s95, 1"); e("s_xor_b32 s95, s95, 1")
        e("s_lshr_b32 s96, s33, 1"); e("s_lshl_b32 s57, s32, 2"); e("s_add_u32 s96, s96, s57")
        s.stamp_fill(0)
        e("s_waitcnt lgkmcnt(0)")
        e("s_load_dword s30, s[28:29], 0")
        s.srd(36, 28, W_SIZE)
        e("s_cmp_ge_u32 s31, 4"); e("s_cbranch_scc1 L_help")
        s.streamer()
        e("s_branch L_tail")
        s.lab("L_help")
        s.helpers()
        s.lab("L_tail")
        s.tail()
        if s.stamps:
            s.stamp(7)
            e(f"s_cmp_eq_u32 s31, {s.sw}"); e("s_cbranch_scc0 L_end")
            s.stamp_write()
        s.lab("L_end"); e("s_endpgm")
        s.L += ['.section .rodata,"a"', ".p2align 6", f".amdhsa_kernel {KN}", "  .amdhsa_next_free_vgpr 256", "  .amdhsa_next_free_sgpr 102",
                "  .amdhsa_accum_offset 256", "  .amdhsa_group_segment_fixed_size 0", "  .amdhsa_kernarg_size 112", "  .amdhsa_user_sgpr_count 2",
                "  .amdhsa_user_sgpr_kernarg_segment_ptr 1", "  .amdhsa_system_sgpr_workgroup_id_x 1", ".end_amdhsa_kernel"]
        return "\n".join(s.L) + "\n"

if __name__ == "__main__":
    kw = {}
    for a in sys.argv[2:]:
        k, v = a.split("="); kw[k] = None if v == "None" else int(v)
    open(sys.argv[1], "w").write(K(**kw).gen())
```
